```python
import torch

def _softmax(x, axis=-1):
    return torch.softmax(x, dim=axis)

def _gelu(x):
    return torch.nn.functional.gelu(x, approximate='tanh')

def _silu(x):
    return torch.nn.functional.silu(x)

def _sigmoid(x):
    return torch.sigmoid(x)

def _layernorm(x, axis=-1, eps=1e-05):
    m = x.mean(dim=axis, keepdim=True)
    v = x.var(dim=axis, keepdim=True, unbiased=False)
    return (x - m) / torch.sqrt(v + eps)

def _scatter_add(tgt, idx, src, axis=0):
    return tgt.clone().index_add_(axis, idx, src)

def _segment_sum(src, seg, n):
    out = torch.zeros((n,) + src.shape[1:], dtype=src.dtype)
    return out.index_add_(0, seg, src)

def _pad(x, pw):
    flat = tuple((v for pair in reversed(pw) for v in pair))
    return torch.nn.functional.pad(x, flat)
kernel_name = 'gated_mix__grouped_kv_mqa__mixer_gmlp__prompt'

def setup_inputs():

    _w = lambda a: (lambda t: t.to(torch.bfloat16) if t.is_floating_point() else t)(torch.as_tensor(a))

    def _A_setup():
        B, S, D, H = (1, 2048, 640, 32)
        Dh = D // H
        return {'x': _w((lambda *s: torch.randn(*s, dtype=torch.bfloat16) * 0.05)(B, S, D)), 'wq': _w((lambda *s: torch.randn(*s, dtype=torch.bfloat16) * 1.6)(D, H * Dh)), 'wk': _w((lambda *s: torch.randn(*s, dtype=torch.bfloat16) * 1.6)(D, Dh)), 'wv': _w((lambda *s: torch.randn(*s, dtype=torch.bfloat16) * 0.2)(D, Dh)), 'wo': _w((lambda *s: torch.randn(*s, dtype=torch.bfloat16) * 0.2)(H * Dh, D))}
    _A_in = _A_setup()

    def _B_setup():
        B, S, D, F = (1, 2048, 640, 1536)
        Fh = F // 2
        return {'x': _w((lambda *s: torch.randn(*s, dtype=torch.bfloat16) * 0.05)(B, S, D)), 'w_in': _w((lambda *s: torch.randn(*s, dtype=torch.bfloat16) * 0.8)(D, 2 * Fh)), 'w_sp': _w(0.01 * (lambda *s: torch.randn(*s, dtype=torch.bfloat16) * 0.8)(S, S)), 'b_sp': _w(1.0 + 0.01 * (lambda *s: torch.randn(*s, dtype=torch.bfloat16) * 0.05)(S)), 'w_out': _w((lambda *s: torch.randn(*s, dtype=torch.bfloat16) * 0.05)(Fh, D))}
    _B_in = _B_setup()
    return {'A_x': _A_in['x'], 'A_wq': _A_in['wq'], 'A_wk': _A_in['wk'], 'A_wv': _A_in['wv'], 'A_wo': _A_in['wo'], 'B_x': _B_in['x'], 'B_w_in': _B_in['w_in'], 'B_w_sp': _B_in['w_sp'], 'B_b_sp': _B_in['b_sp'], 'B_w_out': _B_in['w_out'], 'gate_w': _w((lambda *s: torch.randn(*s, dtype=torch.bfloat16) * 0.05)(640) * 16.0)}

def reference(A_x, A_wq, A_wk, A_wv, A_wo, B_x, B_w_in, B_w_sp, B_b_sp, B_w_out, gate_w):

    def _A_ref(x, wq, wk, wv, wo):
        B, S, D = x.shape
        H = 32
        Dh = D // H
        q = (lambda x, *d: x.permute(*d))((x @ wq).reshape(B, S, H, Dh), 0, 2, 1, 3)
        k = x @ wk
        v = x @ wv
        scores = torch.einsum('bhqd,bkd->bhqk', q, k) * Dh ** (-0.5)
        p = _softmax(scores, axis=-1)
        o = torch.einsum('bhqk,bkd->bhqd', p, v)
        return (lambda x, *d: x.permute(*d))(o, 0, 2, 1, 3).reshape(B, S, H * Dh) @ wo

    def _B_ref(x, w_in, w_sp, b_sp, w_out):
        B, S, D = x.shape
        F = w_in.shape[-1]
        Fh = F // 2
        z = _gelu(torch.einsum('bsd,df->bsf', x, w_in))
        z1 = z[..., :Fh].clone()
        z2 = _layernorm(z[..., Fh:], axis=-1)
        g = torch.einsum('ts,bsf->btf', w_sp, z2) + b_sp[None, :, None]
        return torch.einsum('bsf,fd->bsd', z1 * g, w_out)
    x = A_x
    g = _sigmoid((x * gate_w).sum(-1, keepdims=True))
    a = _A_ref(x, A_wq, A_wk, A_wv, A_wo)
    b = _B_ref(x, B_w_in, B_w_sp, B_b_sp, B_w_out)
    return g * a + (1 - g) * b
```

```python
import re
TRANS = ("v_exp_f32", "v_log_f32", "v_rcp_f32", "v_rsq_f32", "v_sqrt_f32", "v_sin_f32", "v_cos_f32")

def R(base, n=1, p="v"):
    return f"{p}{base}" if n == 1 else f"{p}[{base}:{base+n-1}]"

class Asm:
    def __init__(self):
        self.lines = []
        self.vmq = []
        self.lgq = []
    def __call__(self, s):
        for ln in s.strip("\n").split("\n"):
            ln = ln.strip()
            if not ln: continue
            self.lines.append(ln if ln.endswith(":") or ln.startswith(".") else "    " + ln)
    def label(self, n): self.lines.append(n + ":")
    def vm(self, s, tag=None):
        self(s); self.vmq.append(tag)
    def vmwait(self, *tags):
        idx = max([i for i, t in enumerate(self.vmq) if t in tags], default=-1)
        if idx < 0: return
        n = len(self.vmq) - 1 - idx
        assert n < 64, n
        self(f"s_waitcnt vmcnt({n})")
        self.vmq = self.vmq[idx+1:]
    def vmwait_all(self):
        self("s_waitcnt vmcnt(0)"); self.vmq = []
    def lg(self, s, tag=None):
        self(s); self.lgq.append(tag)
    def lgwait(self, *tags):
        idx = max([i for i, t in enumerate(self.lgq) if t in tags], default=-1)
        if idx < 0: return
        n = min(len(self.lgq) - 1 - idx, 15)
        self(f"s_waitcnt lgkmcnt({n})")
        self.lgq = self.lgq[len(self.lgq)-n:] if n else []
    def lgwait_all(self):
        self("s_waitcnt lgkmcnt(0)"); self.lgq = []
    def text(self): return "\n".join(self.lines) + "\n"

def regs_of(op):
    op = op.strip().lstrip("-").strip("|")
    m = re.fullmatch(r"([vas])\[(\d+):(\d+)\]", op)
    if m: return {(m[1], i) for i in range(int(m[2]), int(m[3]) + 1)}
    m = re.fullmatch(r"([vas])(\d+)", op)
    if m: return {(m[1], int(m[2]))}
    if op == "vcc": return {("s", "vcc")}
    if op in ("exec", "exec_lo", "exec_hi"): return {("s", "exec")}
    if op == "m0": return {("s", "m0")}
    return set()

class I:
    def __init__(self, ln, no):
        self.ln = ln; self.no = no
        ln = ln.split(";")[0].strip()
        p = ln.split(None, 1)
        self.op = p[0]
        rest = p[1] if len(p) > 1 else ""
        ops = [o.strip() for o in rest.split(",")] if rest else []
        mods = ""
        if ops:
            q = ops[-1].split(None, 1)
            if len(q) > 1: ops[-1], mods = q[0], q[1]
        clean = []
        for o in ops:
            q = o.split(None, 1)
            clean.append(q[0])
            if len(q) > 1: mods += " " + q[1]; break
        ops = clean
        self.mods = rest
        op = self.op
        self.mfma = op.startswith("v_mfma") or op.startswith("v_smfmac")
        self.valu = op.startswith("v_") and not self.mfma
        self.trans = op.replace("_e32", "").replace("_e64", "") in TRANS
        self.dot = op.startswith("v_dot")
        self.vmem = op.startswith("buffer_") or op.startswith("global_")
        self.ds = op.startswith("ds_")
        self.salu = op.startswith("s_")
        self.w = set(); self.r = set(); self.A = set(); self.C = set(); self.sdata = set()
        rs = [regs_of(o) for o in ops]
        U = lambda l: set().union(*l) if l else set()
        if self.mfma:
            self.w = rs[0]
            self.passes = 4 if "16x16" in op else 8
            if op.startswith("v_smfmac"): self.A = U(rs[1:]); self.C = rs[0]
            else: self.A = U(rs[1:3]); self.C = rs[3]
            self.r = self.A | self.C
        elif self.valu:
            if op.startswith("v_permlane") and "swap" in op: self.w = U(rs); self.r = U(rs)
            elif "_co_" in op: self.w = U(rs[:2]); self.r = U(rs[2:])
            elif op.startswith("v_nop"): pass
            else:
                self.w = rs[0]; self.r = U(rs[1:])
                if "fmac" in op or "dot2c" in op or "writelane" in op or "dpp" in self.mods or "quad_perm" in self.mods or "row_" in self.mods: self.r |= rs[0]
                if op.startswith("v_cmpx"): self.w |= {("s", "exec")}
        elif self.ds:
            if "read" in op or "bpermute" in op or "rtn" in op or "swizzle" in op: self.w = rs[0]; self.r = U(rs[1:])
            else: self.r = U(rs)
        elif self.vmem:
            self.lds = bool(re.search(r"\blds\b", rest)) or "_lds_" in op
            if "store" in op or "atomic" in op:
                self.r = U(rs)
                if "x4" in op or "x3" in op: self.sdata = rs[0] if op.startswith("buffer") else rs[1]
                if "atomic" in op and "sc0" in rest: self.w = rs[0]
            elif self.lds: self.r = U(rs) | {("s", "m0")}
            elif op.startswith("buffer_inv") or op.startswith("buffer_wbl2"): pass
            else: self.w = rs[0]; self.r = U(rs[1:])
        elif self.salu:
            if op.startswith("s_cmp") or op.startswith("s_cbranch") or op in ("s_nop", "s_waitcnt", "s_barrier", "s_branch", "s_endpgm", "s_setprio", "s_sleep") or op.startswith("s_bitcmp"):
                self.r = U(rs)
            else:
                self.w = rs[0] if rs else set(); self.r = U(rs[1:])
                if "saveexec" in op: self.w |= {("s", "exec")}
        self.dpp = self.valu and bool(re.search(r"quad_perm|row_|wave_|dpp", self.mods))
        self.slots = int(ops[0]) + 1 if op == "s_nop" else 1

def need(p, c):
    n = 0
    vw = {x for x in p.w if x[0] != "s"}; sw = {x for x in p.w if x[0] == "s"}
    if p.valu:
        if c.mfma and vw & c.r: n = max(n, 3 if p.dot else 2)
        if c.mfma and ("s", "exec") in sw: n = max(n, 4)
        if p.trans and c.valu and not c.trans and vw & c.r: n = max(n, 1)
        if c.valu and c.op.startswith("v_permlane") and vw & c.r: n = max(n, 2)
        if c.dpp and vw & c.r: n = max(n, 2)
        if c.dpp and ("s", "exec") in sw: n = max(n, 5)
        if c.op.startswith("v_read") and vw & c.r: n = max(n, 1)
        if c.op.startswith("v_read") and ("s", "exec") in sw: n = max(n, 4)
        if c.vmem and sw & c.r: n = max(n, 5)
        if c.valu and (sw & c.r or (("s", "vcc") in sw and c.op.startswith("v_cndmask"))): n = max(n, 4 if "lane" in c.op else 2)
        if p.dot and vw & (c.r | c.w):
            if c.op != p.op: n = max(n, 3)
            else:
                ops = [o.strip() for o in c.mods.split(",")]
                if vw & (regs_of(ops[1]) | regs_of(ops[2].split()[0])): n = max(n, 3)
        if "op_sel" in p.mods and not p.op.startswith("v_pk") and c.valu and vw & c.r: n = max(n, 1)
    if p.mfma:
        big = {4: 8, 8: 12}[p.passes]
        if c.mfma:
            if p.w & c.A: n = max(n, big)
            if p.w & c.C and not (p.w == c.C and p.passes == c.passes): n = max(n, big - 2)
        elif (c.valu or c.vmem or c.ds) and p.w & (c.r | c.w): n = max(n, big)
        if c.valu and p.C & c.w: n = max(n, {4: 3, 8: 7}[p.passes])
    if p.salu and ("s", "m0") in p.w and c.vmem and getattr(c, "lds", False): n = max(n, 1)
    if p.sdata and p.sdata & c.w: n = max(n, 2 if c.valu else 1)
    return n

def check_seq(seq, start, errs):
    for ci in range(start, len(seq)):
        c = seq[ci]; d = 0
        for pi in range(ci - 1, max(-1, ci - 14), -1):
            p = seq[pi]
            n = need(p, c)
            if n > d: errs.add(f"line {p.no} [{p.ln.strip()}] -> line {c.no} [{c.ln.strip()}] needs {n}, has {d}")
            d += p.slots + (1 if p.trans and seq[pi+1].trans else 0)
            if d >= 20: break

def check_hazards(text):
    ins = []; labels = {}
    for no, ln in enumerate(text.split("\n"), 1):
        s = ln.split(";")[0].strip()
        if not s or s.startswith("."): continue
        if s.endswith(":"): labels[s[:-1]] = len(ins); continue
        ins.append(I(ln, no))
    errs = set()
    seg = []
    for i in ins:
        seg.append(i)
        if i.op in ("s_branch", "s_endpgm"): check_seq(seg, 0, errs); seg = []
    check_seq(seg, 0, errs)
    for k, i in enumerate(ins):
        if i.op.startswith("s_cbranch") or i.op == "s_branch":
            t = labels[i.mods.strip()]
            pre = ins[max(0, k - 14):k + 1]
            for j in range(len(pre) - 2, -1, -1):
                if pre[j].op in ("s_branch", "s_endpgm"): pre = pre[j+1:]; break
            post = []
            for x in ins[t:t + 14]:
                post.append(x)
                if x.op in ("s_branch", "s_endpgm"): break
            check_seq(pre + post, len(pre), errs)
    return sorted(errs)
```

```python
from asmlib import *
NAME = "gated_mix__grouped_kv_mqa__mixer_gmlp__prompt"
KA = dict(x=0, wq=8, wk=16, wv=24, wo=32, w_in=48, w_sp=56, b_sp=64, w_out=72, gate=80, out=88, dbg=96, ws=104)
SZ = dict(x=2048*640*2, wq=640*640*2, wk=640*20*2, wv=640*20*2, wo=640*640*2, w_in=640*1536*2, w_sp=2048*2048*2,
          b_sp=4096, w_out=768*640*2, gate=1280, out=2048*640*2, dbg=256, ws=0x2000000)
WS_KV = 0x0
WS_KMAX = 0x30000
WS_GATE = 0x31000
WS_Q = 0x40000
WS_STAT = 0x300000
WS_Z1 = 0x400000
WS_Z2 = 0x800000
WS_Z2N = 0xC00000
WS_Y = 0x1000000
WS_TS = 0x1800000
BIG = 0x7ff00000

def srd(a, s, name, tmp):
    a(f"s_load_dwordx2 s[{s}:{s+1}], s[0:1], {KA[name]}")
    a(f"s_mov_b32 s{s+2}, {SZ[name]:#x}")
    a(f"s_mov_b32 s{s+3}, 0x00020000")

def wg_map(a, srb, scg, mode, t):
    if mode == "8x4":
        a(f"""s_and_b32 s{scg}, s2, 1
        s_lshl_b32 s{scg}, s{scg}, 2
        s_bfe_u32 s{t}, s2, 0x20003
        s_or_b32 s{scg}, s{scg}, s{t}
        s_bfe_u32 s{srb}, s2, 0x20001
        s_lshl_b32 s{srb}, s{srb}, 3
        s_lshr_b32 s{t}, s2, 5
        s_or_b32 s{srb}, s{srb}, s{t}""")
    elif mode == "4x8":
        a(f"""s_bfe_u32 s{scg}, s2, 0x30003
        s_and_b32 s{srb}, s2, 7
        s_lshl_b32 s{srb}, s{srb}, 2
        s_lshr_b32 s{t}, s2, 6
        s_or_b32 s{srb}, s{srb}, s{t}""")
    elif mode == "16x2":
        a(f"""s_and_b32 s{scg}, s2, 3
        s_lshl_b32 s{scg}, s{scg}, 1
        s_bfe_u32 s{t}, s2, 0x10003
        s_or_b32 s{scg}, s{scg}, s{t}
        s_bfe_u32 s{srb}, s2, 0x10002
        s_lshl_b32 s{srb}, s{srb}, 4
        s_lshr_b32 s{t}, s2, 4
        s_or_b32 s{srb}, s{srb}, s{t}""")
    else: raise ValueError

def kernel_head(a, name, ngrid):
    a.lines += [f".globl {name}", ".p2align 8", f".type {name},@function", f"{name}:"]
    a(f"""s_cmp_lt_u32 s2, {ngrid}
    s_cbranch_scc1 {name}_go
    s_endpgm
    {name}_go:""")

def descriptor(name, vgpr, accum=None):
    accum = accum or (vgpr + 3) // 4 * 4
    return f""".p2align 6
.amdhsa_kernel {name}
  .amdhsa_next_free_vgpr {vgpr}
  .amdhsa_next_free_sgpr 102
  .amdhsa_accum_offset {accum}
  .amdhsa_group_segment_fixed_size 0
  .amdhsa_kernarg_size 112
  .amdhsa_user_sgpr_count 2
  .amdhsa_user_sgpr_kernarg_segment_ptr 1
  .amdhsa_system_sgpr_workgroup_id_x 1
.end_amdhsa_kernel
"""

def stamp(a, opt, kidx, slot, sws, swave, vt, nw=16):
    if not opt.get("ts"): return
    a(f"""s_memrealtime s[96:97]
    s_memtime s[100:101]
    s_lshl_b32 s98, s2, 4
    s_add_u32 s98, s98, s{swave}
    s_lshl_b32 s98, s98, 6
    s_add_u32 s98, s98, {WS_TS + kidx*0x40000 + slot*4}
    s_waitcnt lgkmcnt(0)
    v_mov_b32 v{vt}, s96
    v_mov_b32 v{vt+1}, 0""")
    a.lgq = []
    a.vm(f"buffer_store_dword v{vt}, v{vt+1}, s[{sws}:{sws+3}], s98 offen", "ts")
    a(f"v_mov_b32 v{vt}, s100")
    a.vm(f"buffer_store_dword v{vt}, v{vt+1}, s[{sws}:{sws+3}], s98 offen offset:32", "ts")
```

```python
import sys, json
from common import *
def build(opt, kernels):
    ks = [g(opt) for g in kernels]
    head = open("cdna_kernels/" + NAME + ".s.ref").read().split("; Override launch")[0]
    out = head
    for a, (n, grid, block, lds, vg) in ks:
        out += f"; @launch kernel={n} grid=({grid},1,1) block=({block},1,1) lds={lds}\n"
    out += '.amdgcn_target "amdgcn-amd-amdhsa--gfx950"\n.text\n'
    seen = set()
    for a, meta in ks:
        if meta[0] in seen: continue
        seen.add(meta[0])
        t = a.text()
        errs = check_hazards(t)
        for e in errs: print("HAZARD", meta[0], e, file=sys.stderr)
        out += t
    out += '.section .rodata,"a"\n'
    seen = set()
    for a, (n, grid, block, lds, vg) in ks:
        if n in seen: continue
        seen.add(n)
        out += descriptor(n, *(vg if isinstance(vg, tuple) else (vg,)))
    return out
```

```python
from common import *
L_KV = 0
L_G = 49152
L_C = L_G + 4 * 18432
L_END = L_C + 8 * 3072

def gen_A(opt):
    a = Asm(); N = "attn_kernel"
    kernel_head(a, N, 256)
    sWS, sSP, sBS = 8, 12, 16
    sRB, sCG, sW, sT, sT2, sT3, sA, sKH = 20, 21, 22, 23, 24, 25, 26, 27
    srd(a, sWS, "ws", sT); srd(a, sSP, "w_sp", sT); srd(a, sBS, "b_sp", sT)
    wg_map(a, sRB, sCG, opt.get("mapA", "8x4"), sT)
    a(f"""v_lshrrev_b32 v1, 6, v0
    v_and_b32 v0, 63, v0
    v_readfirstlane_b32 s{sW}, v1
    s_waitcnt lgkmcnt(0)""")
    stamp(a, opt, 2, 0, sWS, sW, 160)
    a(f"""s_cmp_ge_u32 s{sW}, 8
    s_cbranch_scc1 {N}_G""")
    att(a, opt, N, sWS, sRB, sCG, sW, sT, sT2, sT3, sA, sKH)
    a.label(f"{N}_G"); a.vmq = ["ts", "ts"] if opt.get("ts") else []; a.lgq = []
    gwave(a, opt, N, sWS, sSP, sBS, sRB, sCG, sW, sT, sT2, sT3)
    return a, (N, 256, 768, L_END, 168)

def att(a, opt, N, sWS, sRB, sCG, sW, sT, sT2, sT3, sA, sKH):
    WS = f"s[{sWS}:{sWS+3}]"
    Q = [4, 10]; K1, K2, V0, V1 = 16, 20, 22, 26
    IDX, aK1, aK2, aV, vL16, vG, vH = 30, 31, 1, 2, 3, 96, 97
    S = [32, 48]; O = [64, 80]; T = 98
    a(f"""s_and_b32 s{sA}, s{sW}, 3
    s_lshr_b32 s{sKH}, s{sW}, 2
    v_lshlrev_b32 v{vL16}, 4, v0
    v_lshlrev_b32 v{aK2}, 3, v0
    v_lshrrev_b32 v{vH}, 5, v0
    s_lshl_b32 s{sT}, s{sRB}, 3
    s_add_u32 s{sT}, s{sT}, s{sCG}
    s_lshl_b32 s{sT}, s{sT}, 2
    s_add_u32 s{sT}, s{sT}, s{sA}
    s_mul_i32 s{sT}, s{sT}, 2560
    s_add_u32 s{sT}, s{sT}, {WS_Q}
    s_mul_i32 s{sT3}, s{sKH}, 1280
    s_sub_u32 s{sT2}, s{sT}, s{sT3}
    s_add_u32 s{sT2}, s{sT2}, 1280
    s_add_u32 s{sT}, s{sT}, s{sT3}
    v_cmp_gt_u32 vcc, 32, v0
    v_mov_b32 v{T}, {BIG:#x}
    v_and_b32 v{T+1}, 31, v0
    v_cndmask_b32 v{T}, v{T}, v{aK2}, vcc
    v_lshlrev_b32 v{T+1}, 2, v{T+1}
    v_lshlrev_b32 v{T+9}, 2, v0""")
    for q, s in ((0, sT), (1, sT2)):
        a.vm(f"buffer_load_dwordx4 {R(Q[q],4)}, v{vL16}, {WS}, s{s} offen", "q")
        a.vm(f"buffer_load_dwordx2 {R(Q[q]+4,2)}, v{T}, {WS}, s{s} offen offset:1024", "q")
    a(f"s_mov_b32 s{sT}, {WS_KMAX}")
    for g in range(3):
        a.vm(f"buffer_load_dword v{T+2+g}, v{T+9}, {WS}, s{sT} offen offset:{g*256}", "km")
    a(f"""s_lshl_b32 s{sT2}, s{sRB}, 1
    s_add_u32 s{sT2}, s{sT2}, s{sKH}
    s_lshl_b32 s{sT2}, s{sT2}, 7
    s_add_u32 s{sT2}, s{sT2}, {WS_GATE}""")
    a.vm(f"buffer_load_dword v{vG}, v{T+1}, {WS}, s{sT2} offen", "g")
    a(f"""v_and_b32 v{T+5}, 31, v0
    v_min_u32 v{T+6}, 21, v{T+5}
    v_cmp_lt_u32 vcc, 27, v{T+5}
    v_xor_b32 v{T+7}, 1, v{vH}
    v_lshlrev_b32 v{T+6}, 4, v{T+6}
    v_cndmask_b32 v{T+7}, v{vH}, v{T+7}, vcc
    s_movk_i32 s{sT}, 384
    v_mad_u32_u24 v{aV}, v{T+7}, s{sT}, v{T+6}
    s_mul_i32 s{sT}, s{sKH}, 6144
    v_mov_b32 v{IDX}, 0xdddddddd
    v_add_u32 v{aK1}, s{sT}, v{vL16}
    v_add_u32 v{aK2}, s{sT}, v{aK2}
    v_add_u32 v{aV}, s{sT}, v{aV}""")
    for r in list(range(O[0], O[0] + 32)) + list(range(S[1] + 8, S[1] + 16)) + list(range(V1, V1 + 4)):
        a(f"v_mov_b32 v{r}, 0")
    a.vmwait("km")
    for st in ("quad_perm:[1,0,3,2]", "quad_perm:[2,3,0,1]", "row_half_mirror", "row_mirror"):
        for g in range(3):
            a(f"v_max_f32_dpp v{T+2+g}, v{T+2+g}, v{T+2+g} {st} row_mask:0xf bank_mask:0xf")
    for w in (16, 32):
        for g in range(3): a(f"v_mov_b32 v{T+5+g}, v{T+2+g}")
        for g in range(3): a(f"v_permlane{w}_swap_b32 v{T+2+g}, v{T+5+g}")
        for g in range(3): a(f"v_max_f32 v{T+2+g}, v{T+2+g}, v{T+5+g}")
    a(f"""v_add_f32 v{T+2}, v{T+2}, v{T+3}
    v_add_f32 v{T+2}, v{T+2}, v{T+4}""")
    for q in range(2): a(f"v_dot2_f32_bf16 v{T+3+q}, v{Q[q]}, v{Q[q]}, 0")
    for r in range(1, 6):
        for q in range(2): a(f"v_dot2_f32_bf16 v{T+3+q}, v{Q[q]+r}, v{Q[q]+r}, v{T+3+q}")
    a("s_nop 2")
    for q in range(2): a(f"v_mov_b32 v{T+5+q}, v{T+3+q}")
    a("s_nop 1")
    for q in range(2): a(f"v_permlane32_swap_b32 v{T+3+q}, v{T+5+q}")
    for q in range(2): a(f"v_add_f32 v{T+3+q}, v{T+3+q}, v{T+5+q}")
    for q in range(2): a(f"v_mul_f32 v{T+3+q}, v{T+3+q}, v{T+2}")
    for q in range(2): a(f"v_sqrt_f32 v{T+3+q}, v{T+3+q}")
    a(f"v_cmp_gt_u32 vcc, 32, v0")
    if opt.get("force_fb"):
        for q in range(2): a(f"v_add_f32 v{T+3+q}, 0x43480000, v{T+3+q}")
    for q in range(2): a(f"v_mul_f32 v{T+3+q}, 0xbf810000, v{T+3+q}")
    for q in range(2): a(f"v_lshrrev_b32 v{T+3+q}, 16, v{T+3+q}")
    for q in range(2): a(f"v_cndmask_b32 v{Q[q]+4}, v{T+3+q}, v{Q[q]+4}, vcc")
    QK1 = lambda t: f"v_mfma_f32_32x32x16_bf16 {R(S[t],16)}, {R(K1,4)}, {R(Q[t],4)}, 0"
    QK2 = lambda t: f"v_mfma_f32_32x32x8_bf16 {R(S[t],16)}, {R(K2,2)}, {R(Q[t]+4,2)}, {R(S[t],16)}"
    PV = lambda t, h: f"v_smfmac_f32_32x32x32_bf16 {R(O[t],16)}, {R(V1 if h else V0,4)}, {R(S[t]+8*h,8)}, v{IDX}"
    off = lambda j: L_KV + ((j >> 1) & 3) * 12288 + (j & 1) * 3072
    rK1 = lambda j: f"ds_read_b128 {R(K1,4)}, v{aK1} offset:{off(j)}"
    rK2 = lambda j: f"ds_read_b64 {R(K2,2)}, v{aK2} offset:{off(j)+1024}"
    rV = lambda j, h: f"ds_read_b128 {R(V1 if h else V0,4)}, v{aV} offset:{off(j)+1536+768*h}"
    if opt.get("prioA"):
        a(f"""s_cmp_lt_u32 s{sW}, 4
        s_cbranch_scc1 {N}_np
        s_setprio {opt['prioA']}
        {N}_np:""")
    if opt.get("prioAll"): a(f"s_setprio {opt['prioAll']}")
    a("s_barrier")
    stamp(a, opt, 2, 1, sWS, sW, 160)
    a(rK1(0)); a(rK2(0)); a(rV(0, 0))
    a(f"s_mov_b32 s{sT}, 4")
    a("s_waitcnt lgkmcnt(1)")
    a(QK1(0)); a(QK2(0)); a("s_nop 11")
    a(".p2align 6"); a.label(f"{N}_loop")
    p0, p1 = opt.get("sched", ((2, 5, 8, 12), (2, 5, 8, 12)))
    for j in range(8):
        for t in range(2):
            o = 1 - t; pv1, qk1, qk2, pv0 = p1 if t else p0
            for r in range(16):
                if r == pv1:
                    if t == 1: a("s_waitcnt lgkmcnt(0)")
                    a(PV(o, 1))
                    if t == 0: a(rV(j, 1))
                if r == qk1:
                    a(QK1(o))
                    if t == 0:
                        if j & 1: a("s_barrier")
                        a(rK1(j + 1))
                if r == qk2:
                    a(QK2(o))
                    if t == 0: a(rK2(j + 1))
                if r == pv0:
                    if t == 0: a("s_waitcnt lgkmcnt(3)")
                    a(PV(t, 0))
                    if t == 1: a(rV(j + 1, 0))
                if j == 7 and t == 1 and r == 14: a(f"s_sub_u32 s{sT}, s{sT}, 1")
                if j == 7 and t == 1 and r == 15: a(f"s_cmp_lg_u32 s{sT}, 0")
                a(f"v_exp_f32 v{S[t]+r}, v{S[t]+r}")
    a(f"s_cbranch_scc1 {N}_loop")
    a("s_nop 0")
    a(PV(1, 1))
    stamp(a, opt, 2, 2, sWS, sW, 160)
    a(f"""s_mul_i32 s{sT}, s{sW}, 3072
    s_xor_b32 s{sT2}, s{sW}, 4
    s_mul_i32 s{sT2}, s{sT2}, 3072
    s_add_u32 s{sT}, s{sT}, {L_C}
    s_add_u32 s{sT2}, s{sT2}, {L_C}
    v_add_u32 v{T}, s{sT}, v{vL16}
    v_add_u32 v{T+1}, s{sT2}, v{vL16}
    s_waitcnt lgkmcnt(0)
    s_nop 4""")
    for i in range(3): a(f"ds_write_b128 v{T}, {R(O[1]+4*i,4)} offset:{i*1024}")
    a("s_waitcnt lgkmcnt(0)\ns_barrier")
    for i in range(3): a(f"ds_read_b128 {R(S[0]+4*i,4)}, v{T+1} offset:{i*1024}")
    a(f"""s_lshl_b32 s{sT}, s{sRB}, 1
    s_add_u32 s{sT}, s{sT}, s{sKH}
    s_mul_i32 s{sT}, s{sT}, 88
    s_mul_i32 s{sT2}, s{sCG}, 11
    s_add_u32 s{sT}, s{sT}, s{sT2}
    s_add_u32 s{sT2}, s{sT}, s{sA}
    s_lshl_b32 s{sT2}, s{sT2}, 10
    s_add_u32 s40, s{sT2}, {WS_Y}
    s_lshl_b32 s{sT}, s{sT}, 10
    s_lshr_b32 s{sT2}, s{sA}, 1
    s_lshl_b32 s{sT2}, s{sT2}, 9
    s_add_u32 s{sT}, s{sT}, s{sT2}
    s_and_b32 s{sT2}, s{sA}, 1
    s_lshl_b32 s{sT2}, s{sT2}, 3
    s_add_u32 s{sT}, s{sT}, s{sT2}
    s_add_u32 s41, s{sT}, {WS_Y + 4096}
    s_waitcnt lgkmcnt(0)""")
    for r in range(0, 12, 2): a(f"v_pk_add_f32 {R(O[0]+r,2)}, {R(O[0]+r,2)}, {R(S[0]+r,2)}")
    def getl():
        a(f"""v_mov_b32 v{T}, v{O[0]+8}
        v_mov_b32 v{T+1}, v{O[0]+8}
        s_nop 1
        v_permlane32_swap_b32 v{T}, v{T+1}""")
    getl()
    a(f"""v_cmp_le_f32 vcc, 0x17800000, v{T+1}
    v_mov_b32 v{T}, 0x7e800000
    v_cmp_lt_f32 s[42:43], v{T+1}, v{T}
    s_nop 1
    s_and_b64 vcc, vcc, s[42:43]
    s_cmp_eq_u64 vcc, -1
    s_cbranch_scc0 {N}_fb
    {N}_fin:
    v_rcp_f32 v{T+2}, v{T+1}
    s_waitcnt vmcnt(0)
    v_cmp_gt_u32 vcc, 32, v0
    v_mov_b32 v{T}, {BIG:#x}
    v_mul_f32 v{T+2}, v{T+2}, v{vG}
    v_cndmask_b32 v{T}, v{T}, v{vL16}, vcc""")
    for r in range(0, 12, 2): a(f"v_pk_mul_f32 {R(O[0]+r,2)}, {R(O[0]+r,2)}, {R(T+2,2)} op_sel_hi:[1,0]")
    for r in range(6): a(f"v_cvt_pk_bf16_f32 v{S[0]+r}, v{O[0]+2*r}, v{O[0]+2*r+1}")
    a(f"""buffer_store_dwordx4 {R(S[0],4)}, v{vL16}, {WS}, s40 offen
    buffer_store_dwordx2 {R(S[0]+4,2)}, v{T}, {WS}, s41 offen""")
    stamp(a, opt, 2, 3, sWS, sW, 160)
    a("s_endpgm")
    a.label(f"{N}_fb")
    a(f"""s_mul_i32 s{sT}, s{sKH}, 6144
    v_subrev_u32 v{aK2}, s{sT}, v{aK2}
    v_subrev_u32 v{aV}, s{sT}, v{aV}
    v_cmp_gt_u32 vcc, 32, v0
    v_mov_b32 v{T}, 0xff800000
    s_mov_b32 s{sT}, {WS_KV}
    v_cndmask_b32 v{Q[0]+4}, 0, v{Q[0]+4}, vcc
    {N}_fb1:
    buffer_load_dwordx4 {R(K1,4)}, v{vL16}, {WS}, s{sT} offen
    buffer_load_dwordx2 {R(K2,2)}, v{aK2}, {WS}, s{sT} offen offset:1024
    s_waitcnt vmcnt(0)
    {QK1(0)}
    {QK2(0)}
    s_add_u32 s{sT}, s{sT}, 3072
    s_nop 11""")
    for r in range(0, 16, 2): a(f"v_max3_f32 v{T}, v{T}, v{S[0]+r}, v{S[0]+r+1}")
    a(f"""s_cmp_lt_u32 s{sT}, {WS_KV + 64*3072}
    s_cbranch_scc1 {N}_fb1
    v_mov_b32 v{T+1}, v{T}
    s_nop 1
    v_permlane32_swap_b32 v{T}, v{T+1}
    v_max_f32 v{T}, v{T}, v{T+1}
    v_sub_f32 v{T}, 0, v{T}
    v_and_b32 v{T+1}, 0xffff0000, v{T}
    v_sub_f32 v{T}, v{T}, v{T+1}
    v_and_b32 v{T+2}, 0xffff0000, v{T}
    v_sub_f32 v{T}, v{T}, v{T+2}
    v_lshrrev_b32 v{T+1}, 16, v{T+1}
    v_lshrrev_b32 v{T}, 16, v{T}
    v_or_b32 v{T+1}, v{T+1}, v{T+2}
    v_cndmask_b32 v{Q[0]+4}, v{T+1}, v{Q[0]+4}, vcc
    v_cndmask_b32 v{Q[0]+5}, v{T}, v{Q[0]+5}, vcc
    s_mov_b32 s{sT}, {WS_KV}""")
    for r in range(16): a(f"v_mov_b32 v{O[0]+r}, 0")
    a(f"""{N}_fb2:
    buffer_load_dwordx4 {R(K1,4)}, v{vL16}, {WS}, s{sT} offen
    buffer_load_dwordx2 {R(K2,2)}, v{aK2}, {WS}, s{sT} offen offset:1024
    buffer_load_dwordx4 {R(V0,4)}, v{aV}, {WS}, s{sT} offen offset:1536
    buffer_load_dwordx4 {R(V1,4)}, v{aV}, {WS}, s{sT} offen offset:2304
    s_waitcnt vmcnt(0)
    {QK1(0)}
    {QK2(0)}
    s_add_u32 s{sT}, s{sT}, 3072
    s_nop 11""")
    for r in range(16): a(f"v_exp_f32 v{S[0]+r}, v{S[0]+r}")
    a(f"""s_nop 1
    {PV(0,0)}
    {PV(0,1)}
    s_cmp_lt_u32 s{sT}, {WS_KV + 64*3072}
    s_cbranch_scc1 {N}_fb2
    s_nop 11""")
    getl()
    a(f"s_branch {N}_fin")

def gwave(a, opt, N, sWS, sSP, sBS, sRB, sCG, sW, sT, sT2, sT3):
    WS = f"s[{sWS}:{sWS+3}]"; SP = f"s[{sSP}:{sSP+3}]"; BS = f"s[{sBS}:{sBS+3}]"
    ACC, ZR, B, aB, vOE, vOO, vL16 = 16, 112, 8, 4, 1, 2, 3
    X = 160
    sJ, sLG, sZ, sWsp, sKV, sKVL = 28, 29, 30, 31, 32, 33
    a(f"""s_sub_u32 s{sJ}, s{sW}, 8
    v_lshlrev_b32 v{vL16}, 4, v0
    s_mul_i32 s{sKV}, s{sJ}, 3072
    s_add_u32 s{sKVL}, s{sKV}, {L_KV}""")
    if WS_KV: a(f"s_add_u32 s{sKV}, s{sKV}, {WS_KV}")
    def kv(c):
        a(f"s_add_u32 m0, s{sKVL}, {(c & 3)*12288}")
        a(f"s_add_u32 s{sT}, s{sKV}, {c*12288}")
        for i in range(3): a.vm(f"buffer_load_dwordx4 v{vL16}, {WS}, s{sT} offen offset:{i*1024} lds", f"kv{c}")
    kv(0)
    a(f"""s_mul_i32 s{sLG}, s{sJ}, 18432
    s_add_u32 s{sLG}, s{sLG}, {L_G}
    s_mul_i32 s{sZ}, s{sCG}, {128*3072}
    s_mul_i32 s{sT}, s{sJ}, {4*3072}
    s_add_u32 s{sZ}, s{sZ}, s{sT}
    s_add_u32 s{sZ}, s{sZ}, {WS_Z2N}
    s_lshl_b32 s{sWsp}, s{sRB}, 18
    s_lshl_b32 s{sT}, s{sJ}, 7
    s_add_u32 s{sWsp}, s{sWsp}, s{sT}
    v_lshrrev_b32 v{X}, 3, v0
    v_lshrrev_b32 v{X+1}, 4, v0
    v_and_b32 v{X+2}, 7, v0
    v_xor_b32 v{X+2}, v{X+2}, v{X+1}
    v_lshlrev_b32 v{X}, 12, v{X}
    v_lshl_add_u32 v{vOE}, v{X+2}, 4, v{X}
    v_xor_b32 v{vOO}, 64, v{vOE}""")
    def wsp(i):
        if opt.get("nomem") and i > 1: return
        for r in range(8):
            a(f"s_add_u32 m0, s{sLG}, {(i & 1)*8192 + r*1024}")
            a(f"s_add_u32 s{sT}, s{sWsp}, {i*512 + r*8*4096}")
            a.vm(f"buffer_load_dwordx4 v{vOO if r & 1 else vOE}, {SP}, s{sT} offen lds", f"w{i}")
    def z2(k):
        if opt.get("nomem") and k > 3: return
        a(f"s_add_u32 s{sT}, s{sZ}, {((k >> 2)*16 + (k & 3))*3072}")
        for t in range(3): a.vm(f"buffer_load_dwordx4 {R(ZR + (k & 3)*12 + 4*t, 4)}, v{vL16}, {WS}, s{sT} offen offset:{t*1024}", f"z{k}")
    wsp(0); z2(0); kv(1); z2(1); z2(2); z2(3)
    a(f"""v_and_b32 v{X}, 31, v0
    v_lshrrev_b32 v{X+1}, 5, v0
    v_bfe_u32 v{X+2}, v0, 1, 3
    v_xor_b32 v{X+1}, v{X+1}, v{X+2}
    v_lshlrev_b32 v{X+1}, 4, v{X+1}
    v_lshl_add_u32 v{X+1}, v{X}, 7, v{X+1}""")
    for kk in range(4):
        a(f"v_xor_b32 v{aB+kk}, {kk*32}, v{X+1}")
    for kk in range(4):
        a(f"v_add_u32 v{aB+kk}, s{sLG}, v{aB+kk}")
    if opt.get("prioG"): a(f"s_setprio {opt['prioG']}")
    sched = opt.get("gsched", [2,2,3,2,2,2,3,2,2,2,3,2,2,2,1,0])
    assert sum(sched) == 32
    last = max(c for c in range(16) if sched[c]); assert last >= 13
    rB = lambda k, p: a.lg(f"ds_read_b128 {R(B+4*p,4)}, v{aB+(k&3)} offset:{((k>>2)&1)*8192 + p*4096}", f"b{p}")
    k = 0
    for c in range(17):
        a.vmwait(f"kv{c}")
        a("s_barrier")
        if c + 2 < 16: kv(c + 2)
        for _ in range(sched[c] if c < 16 else 0):
            if k & 3 == 0:
                if (k >> 2) + 1 < 8: wsp((k >> 2) + 1)
                a.vmwait(f"w{k>>2}")
                rB(k, 0); rB(k, 1)
            a.vmwait(f"z{k}")
            for p in range(2):
                a.lgwait(f"b{p}")
                for t in range(0 if opt.get("nogm") else 3):
                    d = R(ACC + (p*3+t)*16, 16)
                    a(f"v_mfma_f32_32x32x16_bf16 {d}, {R(ZR + (k&3)*12 + 4*t, 4)}, {R(B+4*p,4)}, {d if k else 0}")
                if (k + 1) & 3: rB(k + 1, p)
            if k + 4 < 32: z2(k + 4)
            k += 1
        if c == last: break
    Z1, vB, vG = ZR, X, X + 2
    a(f"""s_lshl_b32 s{sT}, s{sRB}, 3
    s_add_u32 s{sT}, s{sT}, s{sCG}
    s_mul_i32 s{sT}, s{sT}, 12288
    s_mul_i32 s{sT2}, s{sJ}, 3072
    s_add_u32 s{sT}, s{sT}, s{sT2}
    s_add_u32 s{sT}, s{sT}, {WS_Z1}
    s_lshr_b32 s{sT3}, s{sJ}, 1
    s_lshl_b32 s{sT2}, s{sRB}, 1
    s_add_u32 s{sT3}, s{sT3}, s{sT2}
    v_and_b32 v{X+4}, 31, v0
    v_lshlrev_b32 v{X+5}, 2, v{X+4}
    v_lshlrev_b32 v{X+4}, 1, v{X+4}""")
    for u in range(3): a.vm(f"buffer_load_dwordx4 {R(Z1+4*u,4)}, v{vL16}, {WS}, s{sT} offen offset:{u*1024}", "e")
    a(f"s_lshl_b32 s{sT}, s{sT3}, 6")
    a.vm(f"buffer_load_ushort v{vB}, v{X+4}, {BS}, s{sT} offen", "e")
    a(f"s_lshl_b32 s{sT}, s{sT3}, 7\ns_add_u32 s{sT}, s{sT}, {WS_GATE}")
    a.vm(f"buffer_load_dword v{vG}, v{X+5}, {WS}, s{sT} offen", "e")
    a(f"""s_mul_i32 s{sT3}, s{sT3}, 88
    s_mul_i32 s{sT}, s{sCG}, 11
    s_add_u32 s{sT3}, s{sT3}, s{sT}
    s_and_b32 s{sT}, s{sJ}, 1
    s_mul_i32 s{sT}, s{sT}, 3
    s_add_u32 s{sT3}, s{sT3}, s{sT}
    s_lshl_b32 s{sT3}, s{sT3}, 10
    s_add_u32 s{sT3}, s{sT3}, {WS_Y + 5*1024}
    v_add_u32 v{aB}, s{sLG}, v{vL16}
    v_add_u32 v{aB+1}, {L_G}, v{vL16}
    v_add_u32 v{aB+2}, {L_G + 2*18432}, v{vL16}""")
    F = ZR + 12
    saved = list(a.vmq)
    for j in range(4):
        a.vmq = list(saved)
        if j < 3: a(f"s_cmp_lg_u32 s{sJ}, {j}\ns_cbranch_scc1 {N}_r{j+1}")
        others = [e for e in range(12) if e // 3 != j]
        for i, e in enumerate(others):
            for h in range(2): a(f"ds_write_b128 v{aB}, {R(ACC+e*8+4*h,4)} offset:{i*2048+h*1024}")
        a.vmwait(f"kv{last+1}")
        a("s_waitcnt lgkmcnt(0)\ns_barrier")
        dst = [e for e in others]
        n = 0
        for s in range(4):
            if s == j: continue
            so = [e for e in range(12) if e // 3 != s]
            for u in range(3):
                i = so.index(3*j + u)
                for h in range(2):
                    a.lg(f"ds_read_b128 {R(ACC+dst[n]*8+4*h,4)}, v{aB+1+(s>>1)} offset:{(s&1)*18432+i*2048+h*1024}", f"r{n}")
                n += 1
        for n in range(9):
            a.lgwait(f"r{n}")
            u = n % 3
            for r in range(0, 8, 2):
                src = ACC + (3*j+u)*8 + r if n < 3 else F + u*8 + r
                a(f"v_pk_add_f32 {R(F+u*8+r,2)}, {R(src,2)}, {R(ACC+dst[n]*8+r,2)}")
        if j < 3: a(f"s_branch {N}_rd\n{N}_r{j+1}:")
    a.label(f"{N}_rd")
    a.vmwait_all()
    a(f"""v_lshlrev_b32 v{vB}, 16, v{vB}
    v_sub_f32 v{vG}, 1.0, v{vG}
    v_mul_f32 v{vB}, v{vB}, v{vG}""")
    for r in range(0, 24, 2):
        a(f"v_lshlrev_b32 v{ACC+r}, 16, v{Z1+r//2}")
        a(f"v_and_b32 v{ACC+r+1}, 0xffff0000, v{Z1+r//2}")
        a(f"v_pk_fma_f32 {R(F+r,2)}, {R(F+r,2)}, {R(vG,2)}, {R(vB,2)} op_sel_hi:[1,0,0]")
        a(f"v_pk_mul_f32 {R(F+r,2)}, {R(F+r,2)}, {R(ACC+r,2)}")
        a(f"v_cvt_pk_bf16_f32 v{ACC+32+r//2}, v{F+r}, v{F+r+1}")
        if r % 8 == 6: a(f"buffer_store_dwordx4 {R(ACC+32+(r//8)*4,4)}, v{vL16}, {WS}, s{sT3} offen offset:{(r//8)*1024}")
    stamp(a, opt, 2, 3, sWS, sW, 164)
    a("s_endpgm")
```

```python
from common import *
from kP import fb
def gen_N(opt):
    a = Asm(); N = "norm_kernel"
    kernel_head(a, N, 256)
    sWS, sW, sT, sT2 = 8, 12, 13, 14
    WS = f"s[{sWS}:{sWS+3}]"
    srd(a, sWS, "ws", sT)
    X, F, S = 4, 16, 40
    a(f"""v_lshrrev_b32 v1, 5, v0
    v_and_b32 v2, 31, v0
    s_mov_b32 s{sT}, {128*3072}
    v_mul_lo_u32 v1, v1, s{sT}
    s_lshr_b32 s{sT}, s2, 1
    s_mul_i32 s{sT}, s{sT}, 3072
    s_and_b32 s{sT2}, s2, 1
    s_lshl_b32 s{sT2}, s{sT2}, 9
    s_add_u32 s{sT}, s{sT}, s{sT2}
    s_add_u32 s{sT2}, s{sT}, {WS_Z2N}
    s_add_u32 s{sT}, s{sT}, {WS_Z2}
    v_lshl_add_u32 v1, v2, 4, v1
    s_waitcnt lgkmcnt(0)""")
    for i in range(3): a.vm(f"buffer_load_dwordx4 {R(X+4*i,4)}, v1, {WS}, s{sT} offen offset:{i*1024}", f"x{i}")
    a(f"""v_lshrrev_b32 v2, 4, v0
    v_lshlrev_b32 v2, 4, v2
    v_and_b32 v3, 63, v0
    v_lshlrev_b32 v3, 2, v3""")
    for i in range(3):
        a.vmwait(f"x{i}")
        for r in range(4):
            a(f"v_lshlrev_b32 v{F+8*i+2*r}, 16, v{X+4*i+r}")
            a(f"v_and_b32 v{F+8*i+2*r+1}, 0xffff0000, v{X+4*i+r}")
        for r in range(0, 8, 2):
            f = R(F+8*i+r, 2)
            if i == 0: a(f"v_pk_mul_f32 {R(S+8+r,2)}, {f}, {f}")
            else:
                a(f"v_pk_add_f32 {R(S+r,2)}, {R(F+r,2) if i == 1 else R(S+r,2)}, {f}")
                a(f"v_pk_fma_f32 {R(S+8+r,2)}, {f}, {f}, {R(S+8+r,2)}")
    a("s_nop 1")
    for j in range(8): a(f"v_permlane32_swap_b32 v{S+j}, v{S+8+j}")
    for j in range(0, 8, 2): a(f"v_pk_add_f32 {R(S+j,2)}, {R(S+j,2)}, {R(S+8+j,2)}")
    a("s_nop 1")
    for j in range(4): a(f"v_permlane16_swap_b32 v{S+j}, v{S+4+j}")
    for j in range(0, 4, 2): a(f"v_pk_add_f32 {R(S+j,2)}, {R(S+j,2)}, {R(S+4+j,2)}")
    a("s_nop 1")
    for st in ("quad_perm:[1,0,3,2]", "quad_perm:[2,3,0,1]", "row_half_mirror", "row_mirror"):
        for j in range(4): a(f"v_add_f32_dpp v{S+j}, v{S+j}, v{S+j} {st} row_mask:0xf bank_mask:0xf")
    a(f"""ds_write_b128 v2, {R(S,4)}
    s_waitcnt lgkmcnt(0)
    s_barrier
    ds_read_b32 v{S}, v3
    s_waitcnt lgkmcnt(0)
    v_mov_b32 v{S+1}, v{S}
    s_nop 1
    v_permlane32_swap_b32 v{S}, v{S+1}
    v_add_f32 v{S}, v{S}, v{S+1}
    v_mov_b32 v{S+1}, v{S}
    s_nop 1
    v_permlane16_swap_b32 v{S}, v{S+1}
    v_add_f32 v{S}, v{S}, v{S+1}
    v_mul_f32 v{S}, {fb(1/768)}, v{S}
    s_nop 1
    v_mov_b32_dpp v{S+1}, v{S} row_ror:8 row_mask:0xf bank_mask:0xf
    v_fma_f32 v{S+1}, -v{S}, v{S}, v{S+1}
    v_max_f32 v{S+1}, 0, v{S+1}
    v_add_f32 v{S+1}, {fb(1e-5)}, v{S+1}
    v_rsq_f32 v{S+1}, v{S+1}
    s_nop 0
    v_mul_f32_e64 v{S}, -v{S}, v{S+1}
    s_nop 1""")
    B = S + 2
    for j in range(8):
        a(f"v_mov_b32_dpp v{B+j}, v{S+1} row_newbcast:{j} row_mask:0xf bank_mask:0xf")
        a(f"v_mov_b32_dpp v{B+8+j}, v{S} row_newbcast:{j} row_mask:0xf bank_mask:0xf")
    for i in range(3):
        for r in range(0, 8, 2): a(f"v_pk_fma_f32 {R(F+8*i+r,2)}, {R(F+8*i+r,2)}, {R(B+r,2)}, {R(B+8+r,2)}")
        for r in range(4): a(f"v_cvt_pk_bf16_f32 v{X+4*i+r}, v{F+8*i+2*r}, v{F+8*i+2*r+1}")
        a(f"buffer_store_dwordx4 {R(X+4*i,4)}, v1, {WS}, s{sT2} offen offset:{i*1024}")
    a("s_endpgm")
    return a, (N, 256, 256, 256, 64)
```

```python
from common import *
SL = 30720; NSL = 5
def gen_O(opt):
    a = Asm(); N = "out_kernel"
    kernel_head(a, N, 256)
    sWS, sWO, sWU, sOUT = 8, 12, 16, 20
    sRB, sCG, sW, sT, sT2, sT3, sPT, sKH = range(24, 32)
    WS = f"s[{sWS}:{sWS+3}]"
    srd(a, sWS, "ws", sT); srd(a, sWO, "wo", sT); srd(a, sWU, "w_out", sT); srd(a, sOUT, "out", sT)
    wg_map(a, sRB, sCG, opt.get("mapO", "8x4"), sT)
    a(f"""v_lshrrev_b32 v1, 6, v0
    v_and_b32 v0, 63, v0
    v_readfirstlane_b32 s{sW}, v1
    s_and_b32 s{sPT}, s{sW}, 1
    s_bfe_u32 s{sKH}, s{sW}, 0x10001
    s_cmp_ge_u32 s{sW}, 4
    s_cbranch_scc1 {N}_ld""")
    ACC, FW, Y, vL, aW, T = 8, [56, 68], 80, 1, 2, 3
    a(f"""v_lshlrev_b32 v{vL}, 4, v0
    s_lshl_b32 s{sT}, s{sRB}, 1
    s_add_u32 s{sT}, s{sT}, s{sPT}
    s_lshl_b32 s{sT}, s{sT}, 1
    s_add_u32 s{sT}, s{sT}, s{sKH}
    s_mul_i32 s{sT}, s{sT}, {44*1024}
    s_add_u32 s{sT}, s{sT}, {WS_Y}
    s_waitcnt lgkmcnt(0)""")
    stamp(a, opt, 3, 0, sWS, sW, 4)
    for k in range(44):
        a.vm(f"buffer_load_dwordx4 {R(Y+4*k,4)}, v{vL}, {WS}, s{sT} offen offset:{(k&3)*1024}", f"y{k}")
        if k & 3 == 3: a(f"s_add_u32 s{sT}, s{sT}, 4096")
    a(f"""v_bfe_u32 v{T}, v0, 2, 2
    v_lshrrev_b32 v{T+1}, 5, v0
    v_lshl_add_u32 v{T}, v{T}, 1, v{T+1}
    v_and_b32 v{T+1}, 3, v0
    v_bfe_u32 v{T+2}, v0, 4, 1
    v_lshlrev_b32 v{T+1}, 3, v{T+1}
    v_lshl_or_b32 v{T+1}, v{T+2}, 5, v{T+1}
    s_movk_i32 s{sT}, 160
    v_mad_u32_u24 v{aW}, v{T}, s{sT}, v{T+1}
    s_mul_i32 s{sT}, s{sKH}, {SL//2}
    v_add_u32 v{aW}, s{sT}, v{aW}
    v_add_u32 v{aW+1}, {2*SL}, v{aW}
    v_add_u32 v{aW+2}, {4*SL}, v{aW}""")
    steps = [(c, j) for c in range(8) for j in range(6 if c & 1 else 5)]
    def rd(k):
        c, j = steps[k]; sl = c % NSL
        for t in range(3):
            for e in range(2): a.lg(f"ds_read_b64_tr_b16 {R(FW[k&1]+4*t+2*e,2)}, v{aW+(sl>>1)} offset:{(sl&1)*SL+j*2560+e*1280+t*64}", f"f{k}")
    a("s_barrier"); rd(0)
    for k in range(44):
        if k + 1 < 44:
            if steps[k+1][1] == 0:
                a.lgwait(f"f{k}"); a("s_barrier")
            rd(k + 1)
        a.vmwait(f"y{k}"); a.lgwait(f"f{k}")
        for t in range(3):
            d = R(ACC + 16*t, 16)
            a(f"v_mfma_f32_32x32x16_bf16 {d}, {R(FW[k&1]+4*t,4)}, {R(Y+4*k,4)}, {d if k else 0}")
    stamp(a, opt, 3, 1, sWS, sW, 4)
    LR = 3 * SL
    a(f"""s_mul_i32 s{sT}, s{sPT}, 10240
    s_add_u32 s{sT}, s{sT}, {LR}
    v_add_u32 v{aW}, s{sT}, v{vL}
    v_and_b32 v{T}, 31, v0
    v_lshrrev_b32 v{T+1}, 5, v0
    s_movk_i32 s{sT}, 1280
    v_lshlrev_b32 v{T+1}, 4, v{T+1}
    v_mad_u32_u24 v{T}, v{T}, s{sT}, v{T+1}
    s_lshl_b32 s{sT}, s{sRB}, 1
    s_add_u32 s{sT}, s{sT}, s{sPT}
    s_mul_i32 s{sT}, s{sT}, {32*1280}
    s_mul_i32 s{sT2}, s{sCG}, 160
    s_add_u32 s{sT}, s{sT}, s{sT2}
    s_cmp_eq_u32 s{sKH}, 1
    s_cbranch_scc1 {N}_e1""")
    for kh in range(2):
        own, oth = ((0, 1, 2), (3, 4)) if kh == 0 else ((3, 4), (0, 1, 2))
        for u in oth:
            for h in range(2): a(f"ds_write_b128 v{aW}, {R(ACC+8*u+4*h,4)} offset:{u*2048+h*1024}")
        a("s_waitcnt lgkmcnt(0)\ns_barrier")
        for u in own:
            for h in range(2): a.lg(f"ds_read_b128 {R(Y+8*u+4*h,4)}, v{aW} offset:{u*2048+h*1024}", f"r{u}")
        for u in own:
            a.lgwait(f"r{u}")
            for r in range(0, 8, 2): a(f"v_pk_add_f32 {R(ACC+8*u+r,2)}, {R(ACC+8*u+r,2)}, {R(Y+8*u+r,2)}")
            for r in range(4): a(f"v_cvt_pk_bf16_f32 v{Y+8*u+r}, v{ACC+8*u+2*r}, v{ACC+8*u+2*r+1}")
            a("s_nop 1")
            for e in range(2): a(f"v_permlane32_swap_b32 v{Y+8*u+e}, v{Y+8*u+2+e}")
            a(f"buffer_store_dwordx4 {R(Y+8*u,4)}, v{T}, s[{sOUT}:{sOUT+3}], s{sT} offen offset:{u*32}")
        stamp(a, opt, 3, 2, sWS, sW, 4)
        a("s_endpgm")
        if kh == 0: a.label(f"{N}_e1")
    a.label(f"{N}_ld"); a.vmq = []; a.lgq = []
    oR, oS, T = 4, 8, 12
    sO, sU, sL = 32, 33, 34
    a(f"""s_movk_i32 s{sT}, 1280
    s_movk_i32 s{sT2}, 160
    s_movk_i32 s{sT3}, 6554""")
    for i in range(3):
        a(f"""v_add_u32 v{T}, {64*i}, v0
        v_mul_u32_u24 v{T}, s{sT3}, v{T}
        v_lshrrev_b32 v{T}, 16, v{T}
        v_mul_u32_u24 v{T+4}, s{sT2}, v{T}
        v_lshlrev_b32 v{T+5}, 4, v0
        v_sub_u32 v{T+4}, v{T+5}, v{T+4}
        v_bfe_u32 v{T+3}, v{T}, 1, 2
        v_and_b32 v{T+2}, 1, v{T}
        v_lshl_or_b32 v{T+1}, v{T+2}, 2, v{T+3}
        v_and_or_b32 v{T+1}, v{T}, 8, v{T+1}
        v_mad_u32_u24 v{oR+i}, v{T+1}, s{sT}, v{T+4}
        v_bfe_u32 v{T+1}, v{T}, 3, 1
        v_lshl_or_b32 v{T+1}, v{T+2}, 1, v{T+1}
        v_mad_u32_u24 v{T+1}, v{T+1}, 20, v{T+3}
        v_add_u32 v{T+1}, 16, v{T+1}
        v_mad_u32_u24 v{oS+i}, v{T+1}, s{sT}, v{T+4}""")
    a(f"""s_mul_i32 s{sT}, s{sCG}, 160
    s_mul_i32 s{sO}, s{sKH}, {320*1280}
    s_add_u32 s{sO}, s{sO}, s{sT}
    s_mul_i32 s{sU}, s{sKH}, {384*1280}
    s_add_u32 s{sU}, s{sU}, s{sT}
    s_mul_i32 s{sL}, s{sKH}, {SL//2}
    s_waitcnt lgkmcnt(0)
    s_cmp_eq_u32 s{sPT}, 1
    s_cbranch_scc1 {N}_ld1""")
    for par in range(2):
        a.vmq = []
        def dma(c):
            b = c >> 1
            js = ((0, 2, 4), (1, 3, 5))[par] if c & 1 else ((0, 2, 4), (1, 3))[par ^ (b & 1)]
            for j in js:
                sp = (not c & 1) and j == 4
                go = (b*96 + 16*j)*1280 if c & 1 else (b*80 + (0 if sp else 20*j))*1280
                a(f"s_add_u32 m0, s{sL}, {(c % NSL)*SL + j*2560}\ns_add_u32 s{sT}, s{sU if c & 1 else sO}, {go}")
                s = sWU if c & 1 else sWO
                for i in range(3):
                    if i == 2: a("s_mov_b32 exec_hi, 0")
                    a.vm(f"buffer_load_dwordx4 v{(oS if sp else oR)+i}, s[{s}:{s+3}], s{sT} offen offset:{i*1024} lds", f"c{c}")
                a("s_mov_b32 exec_hi, -1")
        for c in range(NSL): dma(c)
        for c in range(8):
            a.vmwait(f"c{c}")
            a("s_barrier")
            if c >= 1 and c - 1 + NSL < 8: dma(c - 1 + NSL)
        a("s_endpgm")
        if par == 0: a.label(f"{N}_ld1")
    return a, (N, 256, 512, NSL * SL, 256)
```

```python
from common import *
CH = 44032
LZ1, LZ2, LQ, LX, LKV = 0, 12288, 24576, 34816, 43008
L_GATE = 3 * CH
L_RED = L_GATE + 2048
LP_END = L_RED + 8192
QS = 1.4426950408889634 * 20 ** -0.5
import struct
def fb(x): return "0x%08x" % struct.unpack("<I", struct.pack("<f", x))[0]

def gelu(a, regs, T, sC):
    for g in range(0, len(regs), 8):
        p = regs[g:g+8:2]
        for i, r in enumerate(p): a(f"v_pk_mul_f32 {R(T+2*i,2)}, {R(r,2)}, {R(r,2)}")
        for i, r in enumerate(p): a(f"v_pk_fma_f32 {R(T+2*i,2)}, {R(T+2*i,2)}, s[{sC}:{sC+1}], {R(T+8,2)}")
        for i, r in enumerate(p): a(f"v_pk_mul_f32 {R(T+2*i,2)}, {R(T+2*i,2)}, {R(r,2)}")
        for i in range(8): a(f"v_exp_f32 v{T+i}, v{T+i}")
        for i, r in enumerate(p): a(f"v_pk_add_f32 {R(T+2*i,2)}, {R(T+2*i,2)}, 1.0 op_sel_hi:[1,0]")
        for i in range(8): a(f"v_rcp_f32 v{T+i}, v{T+i}")
        for i, r in enumerate(p): a(f"v_pk_mul_f32 {R(r,2)}, {R(T+2*i,2)}, {R(r,2)}")

def gen_P(opt):
    a = Asm(); N = "proj_kernel"
    kernel_head(a, N, 256)
    sWS, sX, sWI, sWQ, sKV, sGW = 8, 12, 16, 20, 24, 28
    sRB, sCG, sW, sT, sT2, sT3, sD, sSl, sC = 32, 33, 34, 35, 36, 37, 38, 39, 40
    WS = f"s[{sWS}:{sWS+3}]"
    srd(a, sX, "x", sT); srd(a, sWI, "w_in", sT); srd(a, sWQ, "wq", sT); srd(a, sKV, "wk", sT); srd(a, sGW, "gate", sT); srd(a, sWS, "ws", sT)
    a(f"s_load_dwordx2 s[4:5], s[0:1], {KA['wv']}")
    wg_map(a, sRB, sCG, opt.get("mapP", "8x4"), sT)
    a(f"""v_lshrrev_b32 v1, 6, v0
    v_and_b32 v0, 63, v0
    v_readfirstlane_b32 s{sW}, v1""")
    vH, vPos, aX, T = 1, 2, 4, 100
    a(f"""v_lshrrev_b32 v{vH}, 5, v0
    v_and_b32 v{T}, 31, v0
    v_bfe_u32 v{T+1}, v0, 1, 3
    v_xor_b32 v{T+1}, v{vH}, v{T+1}
    v_lshlrev_b32 v{T+1}, 4, v{T+1}
    v_lshl_add_u32 v{T+1}, v{T}, 7, v{T+1}
    v_and_b32 v{vPos}, 19, v0
    v_bfe_u32 v{T+2}, v0, 2, 1
    v_lshl_or_b32 v{vPos}, v{T+2}, 3, v{vPos}
    v_bfe_u32 v{T+2}, v0, 3, 1
    v_lshl_or_b32 v{vPos}, v{T+2}, 2, v{vPos}""")
    for kk in range(4): a(f"v_xor_b32 v{aX+kk}, {kk*32}, v{T+1}")
    a(f"""v_bfe_u32 v{T+2}, v0, 2, 2
    v_and_b32 v{T+3}, 3, v0
    v_bfe_u32 v{T+4}, v0, 4, 1
    v_lshlrev_b32 v{T+3}, 3, v{T+3}
    v_lshl_or_b32 v{T+3}, v{T+4}, 5, v{T+3}
    s_mov_b32 s{sSl}, 0
    s_waitcnt lgkmcnt(0)""")
    stamp(a, opt, 0, 0, sWS, sW, 120)
    a(f"""s_cmp_ge_u32 s{sW}, 4
    s_cbranch_scc1 {N}_light""")
    ACC = 16; FX = [80, 88]; FW = [64+32, 64+40]
    FX = [80, 88]; FW = [104, 112]; aW = 8
    def advance(regs):
        a(f"""s_add_u32 s{sSl}, s{sSl}, 1
        s_cmp_eq_u32 s{sSl}, 3
        s_cselect_b32 s{sD}, {-2*CH}, {CH}
        s_cselect_b32 s{sSl}, 0, s{sSl}""") if False else None
        a(f"""s_add_u32 s{sSl}, s{sSl}, 1
        s_mov_b32 s{sD}, {CH}
        s_cmp_eq_u32 s{sSl}, 3
        s_cselect_b32 s{sD}, {(-2*CH) & 0xffffffff:#x}, s{sD}
        s_cselect_b32 s{sSl}, 0, s{sSl}""")
        for r in regs: a(f"v_add_u32 v{r}, s{sD}, v{r}")
    def heavy(tag, offA, offB, kstride, estride, swapB):
        def rd(kk, b):
            for p in range(2): a.lg(f"ds_read_b128 {R(FX[b]+4*p,4)}, v{aX+kk} offset:{LX+p*4096}", f"f{b}")
            for w, o in enumerate((offA, offB)):
                for e in range(2): a.lg(f"ds_read_b64_tr_b16 {R(FW[b]+4*w+2*e,2)}, v{aW} offset:{o+kk*kstride+e*estride}", f"f{b}")
        for r in range(64): a(f"v_mov_b32 v{ACC+r}, 0")
        a(f"s_mov_b32 s{sT}, 10\ns_barrier")
        rd(0, 0)
        a.label(f"{N}_{tag}_loop")
        for kk in range(4):
            b = kk & 1
            if kk == 3:
                advance([aX, aW])
                a.lgwait(f"f{b}")
                a("s_barrier")
                rd(0, 0)
                for r in (1, 2, 3): a(f"v_add_u32 v{aX+r}, s{sD}, v{aX+r}")
                a(f"s_sub_u32 s{sT}, s{sT}, 1\ns_cmp_lg_u32 s{sT}, 0")
            else:
                rd(kk + 1, 1 - b)
                a.lgwait(f"f{b}")
            for w in range(2):
                for p in range(2):
                    d = R(ACC + (w*2+p)*16, 16); x, ww = R(FX[b]+4*p, 4), R(FW[b]+4*w, 4)
                    a(f"v_mfma_f32_32x32x16_bf16 {d}, {x if swapB and w else ww}, {ww if swapB and w else x}, {d}")
        a(f"s_cbranch_scc1 {N}_{tag}_loop")
        a.lgwait_all()
        a("s_barrier")
    a(f"""s_cmp_eq_u32 s{sW}, 3
    s_cbranch_scc1 {N}_hq""")
    a(f"""v_lshl_add_u32 v{T+2}, v{vH}, 3, v{T+2}
    s_movk_i32 s{sT}, 192
    v_mad_u32_u24 v{aW}, v{T+2}, s{sT}, v{T+3}
    s_lshl_b32 s{sT}, s{sW}, 6
    v_add_u32 v{aW}, s{sT}, v{aW}""")
    heavy("z", LZ1, LZ2, 3072, 768, True)
    stamp(a, opt, 0, 1, sWS, sW, 120)
    c0 = -2 * (2 / 3.141592653589793) ** 0.5 * 1.4426950408889634
    a(f"""s_mov_b32 s{sC}, {fb(c0*0.044715)}
    s_mov_b32 s{sC+1}, s{sC}
    v_mov_b32 v{80+8}, {fb(c0)}
    v_mov_b32 v{80+9}, {fb(c0)}
    v_lshlrev_b32 v{aX}, 4, v0
    v_lshl_add_u32 v{aX+1}, v{vH}, 5, v{vPos}
    v_lshlrev_b32 v{aX+1}, 4, v{aX+1}
    s_mul_i32 s{sT}, s{sCG}, {128*3072}
    s_mul_i32 s{sT2}, s{sRB}, {4*3072}
    s_add_u32 s{sT}, s{sT}, s{sT2}
    s_lshl_b32 s{sT3}, s{sW}, 10
    s_add_u32 s{sT}, s{sT}, s{sT3}
    s_add_u32 s{sT}, s{sT}, {WS_Z2}
    s_lshl_b32 s{sT2}, s{sRB}, 3
    s_add_u32 s{sT2}, s{sT2}, s{sCG}
    s_mul_i32 s{sT2}, s{sT2}, 12288
    s_lshl_b32 s{sT3}, s{sW}, 11
    s_add_u32 s{sT2}, s{sT2}, s{sT3}
    s_add_u32 s{sT2}, s{sT2}, {WS_Z1}""")
    for u in (4, 5, 6, 7, 0, 1, 2, 3):
        gelu(a, list(range(ACC + u*8, ACC + u*8 + 8)), 80, sC)
        o = 92 + (u & 1) * 4
        for i in range(4): a(f"v_cvt_pk_bf16_f32 v{o+i}, v{ACC+u*8+2*i}, v{ACC+u*8+2*i+1}")
        if u >= 4:
            a(f"buffer_store_dwordx4 {R(o,4)}, v{aX}, {WS}, s{sT} offen offset:{(u&1)*3072}")
            if u == 5: a(f"s_add_u32 s{sT}, s{sT}, 6144")
        else:
            a(f"buffer_store_dwordx4 {R(o,4)}, v{aX+1}, {WS}, s{sT2} offen offset:{(u&1)*1024}")
            if u == 1: a(f"s_add_u32 s{sT2}, s{sT2}, 6144")
    stamp(a, opt, 0, 2, sWS, sW, 120)
    a("s_endpgm")
    def qaddr(dst, g0, p16, p8, t):
        def c(g):
            hd, dg = divmod(g, 5)
            return (hd*2560 + (1024 if dg == 4 else (dg >> 1)*512 + (dg & 1)*8), p8 if dg == 4 else p16)
        (c0_, r0), (c1_, r1) = c(g0), c(g0 + 1)
        a(f"v_add_u32 v{dst}, {c0_}, v{r0}\nv_add_u32 v{t}, {c1_}, v{r1}\nv_cndmask_b32 v{dst}, v{t}, v{dst}, vcc")
    def qbase(s):
        a(f"""s_lshl_b32 s{s}, s{sRB}, 3
        s_add_u32 s{s}, s{s}, s{sCG}
        s_mul_i32 s{s}, s{s}, 10240
        s_add_u32 s{s}, s{s}, {WS_Q}
        s_mov_b32 s{sC}, {fb(QS)}
        s_mov_b32 s{sC+1}, s{sC}
        v_cmp_gt_u32 vcc, 32, v0
        v_lshlrev_b32 v{aX}, 4, v{vPos}
        v_lshlrev_b32 v{aX+1}, 3, v{vPos}""")
    a.label(f"{N}_hq")
    a(f"""v_lshlrev_b32 v{T+2}, 1, v{T+2}
    v_lshl_add_u32 v{T+2}, v{vH}, 3, v{T+2}
    s_movk_i32 s{sT}, 160
    v_mad_u32_u24 v{aW}, v{T+2}, s{sT}, v{T+3}""")
    heavy("q", LQ, LQ + 64, 2560, 160, False)
    qbase(sT)
    for w in range(2):
        for i in range(4): qaddr(80 + w*4 + i, 8*w + 2*i, aX, aX + 1, T)
    for w in range(2):
        for p in range(2):
            for i in range(4):
                r = ACC + (w*2+p)*16 + 4*i
                for e in range(2): a(f"v_pk_mul_f32 {R(r+2*e,2)}, {R(r+2*e,2)}, s[{sC}:{sC+1}]")
                for e in range(2): a(f"v_cvt_pk_bf16_f32 v{r+e}, v{r+2*e}, v{r+2*e+1}")
                a(f"buffer_store_dwordx2 {R(r,2)}, v{80+w*4+i}, {WS}, s{sT} offen offset:{p*1280}")
    a("s_endpgm")
    a.label(f"{N}_light"); a.vmq = ["ts", "ts"] if opt.get("ts") else []; a.lgq = []
    sJ, sOZ, sOQ, sOX, sOK, sLZ, sLQ, sLX, sLK, sPT, sKH = range(44, 55)
    oZ, oQ, oX, oK = 40, 43, 46, 48
    aT, aG, aXL = 50, 54, 56
    a(f"""s_sub_u32 s{sJ}, s{sW}, 4
    s_cmp_ge_u32 s{sCG}, 3
    s_cselect_b32 s{sKV}, s4, s{sKV}
    s_cselect_b32 s{sKV+1}, s5, s{sKV+1}
    s_movk_i32 s{sT}, 5462
    s_movk_i32 s{sT2}, {3072 - 192}
    s_movk_i32 s{sT3}, 6554""")
    for i in range(3):
        a(f"""v_add_u32 v{T+5}, {64*i}, v0
        v_mul_u32_u24 v{T+5}, s{sT}, v{T+5}
        v_lshrrev_b32 v{T+5}, 16, v{T+5}
        v_mul_u32_u24 v{T+5}, s{sT2}, v{T+5}
        v_lshl_add_u32 v{oZ+i}, v0, 4, v{T+5}""")
    a(f"""s_mul_i32 s{sOZ}, s{sJ}, {16*3072}
    s_mul_i32 s{sT}, s{sCG}, 192
    s_add_u32 s{sOZ}, s{sOZ}, s{sT}
    s_mul_i32 s{sLZ}, s{sJ}, 3072
    s_movk_i32 s{sT}, 1280
    s_movk_i32 s{sT2}, 160""")
    for i in range(3):
        a(f"""v_add_u32 v{T+5}, {64*i}, v0
        v_mul_u32_u24 v{T+5}, s{sT3}, v{T+5}
        v_lshrrev_b32 v{T+5}, 16, v{T+5}
        v_and_b32 v{T+6}, 8, v{T+5}
        v_and_b32 v{T+7}, 1, v{T+5}
        v_lshl_or_b32 v{T+6}, v{T+7}, 2, v{T+6}
        v_bfe_u32 v{T+7}, v{T+5}, 1, 2
        v_or_b32 v{T+6}, v{T+6}, v{T+7}
        v_mul_u32_u24 v{T+6}, s{sT}, v{T+6}
        v_mul_u32_u24 v{T+5}, s{sT2}, v{T+5}
        v_lshl_add_u32 v{T+6}, v0, 4, v{T+6}
        v_sub_u32 v{oQ+i}, v{T+6}, v{T+5}""")
    a(f"""v_bfe_u32 v{T+5}, v0, 3, 2
    v_lshl_add_u32 v{T+5}, v{vH}, 3, v{T+5}
    v_mul_u32_u24 v{T+5}, s{sT}, v{T+5}
    v_lshrrev_b32 v{T+6}, 4, v0
    v_and_b32 v{T+7}, 7, v0
    v_xor_b32 v{T+6}, v{T+6}, v{T+7}
    v_lshl_add_u32 v{oX}, v{T+6}, 4, v{T+5}
    v_xor_b32 v{oX+1}, 64, v{oX}
    v_add_u32 v{oX+1}, {4*1280 - 1024}, v{oX+1}
    v_mul_u32_u24 v{oK}, 40, v0
    s_mul_i32 s{sOQ}, s{sJ}, {16*1280}
    s_mul_i32 s{sT}, s{sRB}, {64*1280}
    s_add_u32 s{sOX}, s{sOQ}, s{sT}
    s_mul_i32 s{sT}, s{sCG}, 160
    s_add_u32 s{sOQ}, s{sOQ}, s{sT}
    s_mul_i32 s{sLQ}, s{sJ}, 2560
    s_lshl_b32 s{sLX}, s{sJ}, 11
    s_lshl_b32 s{sLK}, s{sJ}, 8
    s_mul_i32 s{sT}, s{sCG}, 43
    s_lshr_b32 s{sT}, s{sT}, 7
    s_mul_i32 s{sT}, s{sT}, 3
    s_sub_u32 s{sT3}, s{sCG}, s{sT}
    s_lshl_b32 s{sT}, s{sT3}, 4
    s_min_u32 s{sT}, s{sT}, 24
    s_mul_i32 s{sOK}, s{sJ}, 640
    s_add_u32 s{sOK}, s{sOK}, s{sT}""")
    sG3 = 55
    a(f"s_mov_b32 s{sG3}, s{sT3}")
    def dma(c):
        sl = (c % 3) * CH; t = f"c{c}"
        a(f"s_add_u32 m0, s{sLX}, {sl+LX}\ns_add_u32 s{sT}, s{sOX}, {c*128}")
        for i in range(2): a.vm(f"buffer_load_dwordx4 v{oX+i}, s[{sX}:{sX+3}], s{sT} offen offset:{i*1024} lds", t)
        for z in range(2):
            a(f"s_add_u32 m0, s{sLZ}, {sl+(LZ2 if z else LZ1)}\ns_add_u32 s{sT}, s{sOZ}, {c*64*3072 + z*1536}")
            for i in range(3): a.vm(f"buffer_load_dwordx4 v{oZ+i}, s[{sWI}:{sWI+3}], s{sT} offen offset:{i*1024} lds", t)
        a(f"s_add_u32 m0, s{sLQ}, {sl+LQ}\ns_add_u32 s{sT}, s{sOQ}, {c*64*1280}")
        for i in range(3):
            if i == 2: a("s_mov_b32 exec_hi, 0")
            a.vm(f"buffer_load_dwordx4 v{oQ+i}, s[{sWQ}:{sWQ+3}], s{sT} offen offset:{i*1024} lds", t)
        a(f"s_mov_b32 exec_lo, 0xffff\ns_add_u32 m0, s{sLK}, {sl+LKV}\ns_add_u32 s{sT}, s{sOK}, {c*2560}")
        a.vm(f"buffer_load_dwordx4 v{oK}, s[{sKV}:{sKV+3}], s{sT} offen lds", t)
        a("s_mov_b64 exec, -1")
    a(f"""s_lshl_b32 s{sT}, s{sJ}, 9
    s_add_u32 m0, s{sT}, {L_GATE}
    v_lshlrev_b32 v{T+5}, 4, v0
    s_mov_b32 exec_hi, 0""")
    a.vm(f"buffer_load_dwordx4 v{T+5}, s[{sGW}:{sGW+3}], s{sT} offen lds", "c0")
    a("s_mov_b64 exec, -1")
    dma(0); dma(1); dma(2)
    a(f"""s_and_b32 s{sPT}, s{sJ}, 1
    s_lshr_b32 s{sKH}, s{sJ}, 1
    s_lshl_b32 s{sT}, s{sKH}, 6
    v_xor_b32 v{aXL}, s{sT}, v{aX}
    v_lshl_add_u32 v{aG}, v{vH}, 4, s{sT}
    s_lshl_b32 s{sT}, s{sPT}, 12
    v_add_u32 v{aXL}, s{sT}, v{aXL}
    v_add_u32 v{aG}, {L_GATE}, v{aG}
    v_xor_b32 v{aXL+1}, 32, v{aXL}
    s_lshl_b32 s{sT}, s{sKH}, 5
    v_lshl_add_u32 v{T+5}, v{vH}, 3, s{sT}
    v_lshl_add_u32 v{T+6}, v{T+2}, 1, v{T+5}
    v_add_u32 v{T+5}, v{T+2}, v{T+5}
    s_movk_i32 s{sT}, 160
    v_mad_u32_u24 v{T+6}, v{T+6}, s{sT}, v{T+3}
    v_and_b32 v{T+7}, 8, v{T+3}
    v_lshl_add_u32 v{T+5}, v{T+5}, 4, v{T+7}
    v_cmp_eq_u32 vcc, 0, v{T+4}""")
    for k2 in range(2):
        for e in range(2):
            a(f"""v_add_u32 v{T+7}, {LQ + 128 + k2*2560 + e*160}, v{T+6}
            v_add_u32 v{T+8}, {LKV + k2*256 + e*64}, v{T+5}
            v_cndmask_b32 v{aT+2*k2+e}, v{T+8}, v{T+7}, vcc""")
    vGa = 60
    a(f"v_mov_b32 v{vGa}, 0")
    for c in range(10):
        a.vmwait(f"c{c}")
        a("s_barrier")
        for k2 in range(2):
            a.lg(f"ds_read_b128 {R(64+4*k2,4)}, v{aXL+k2} offset:{LX}", f"f{k2}")
            for e in range(2): a.lg(f"ds_read_b64_tr_b16 {R(72+4*k2+2*e,2)}, v{aT+2*k2+e}", f"f{k2}")
            a.lg(f"ds_read_b128 {R(80+4*k2,4)}, v{aG} offset:{c*128+k2*32}", f"f{k2}")
        if c >= 1 and c + 2 < 10: dma(c + 2)
        d = CH if c % 3 != 2 else (-2*CH) & 0xffffffff
        for k2 in range(2):
            a.lgwait(f"f{k2}")
            a(f"v_mfma_f32_32x32x16_bf16 {R(ACC,16)}, {R(72+4*k2,4)}, {R(64+4*k2,4)}, {R(ACC,16) if c or k2 else 0}")
            for i in range(4): a(f"v_dot2_f32_bf16 v{vGa}, v{64+4*k2+i}, v{80+4*k2+i}, v{vGa}")
        if c < 9:
            for r in (aXL, aXL+1, aT, aT+1, aT+2, aT+3): a(f"v_add_u32 v{r}, {d:#x}, v{r}")
    a("s_barrier")
    a(f"""s_lshl_b32 s{sT}, s{sPT}, 12
    s_add_u32 s{sT}, s{sT}, {L_RED}
    v_lshl_add_u32 v{aG}, v0, 4, s{sT}
    s_nop 4
    v_mov_b32 v{ACC+12}, v{vGa}
    s_cmp_eq_u32 s{sKH}, 0
    s_cbranch_scc1 {N}_lfin""")
    for i in range(4): a(f"ds_write_b128 v{aG}, {R(ACC+4*i,4)} offset:{i*1024}")
    a("s_waitcnt lgkmcnt(0)\ns_barrier\ns_endpgm")
    a.label(f"{N}_lfin")
    a("s_barrier")
    for i in range(4): a(f"ds_read_b128 {R(64+4*i,4)}, v{aG} offset:{i*1024}")
    qbase(sT)
    a(f"s_mul_i32 s{sT2}, s{sPT}, 1280\ns_add_u32 s{sT}, s{sT}, s{sT2}")
    for i in range(2): qaddr(84 + i, 16 + 2*i, aX, aX + 1, T)
    a("s_waitcnt lgkmcnt(0)")
    for r in range(0, 14, 2): a(f"v_pk_add_f32 {R(ACC+r,2)}, {R(ACC+r,2)}, {R(64+r,2)}")
    for i in range(2):
        r = ACC + 4*i
        for e in range(2): a(f"v_pk_mul_f32 {R(r+2*e,2)}, {R(r+2*e,2)}, s[{sC}:{sC+1}]")
        for e in range(2): a(f"v_cvt_pk_bf16_f32 v{r+e}, v{r+2*e}, v{r+2*e+1}")
        a(f"buffer_store_dwordx2 {R(r,2)}, v{84+i}, {WS}, s{sT} offen")
    KVr = ACC + 8
    a(f"""s_lshl_b32 s{sT3}, s{sRB}, 1
    s_add_u32 s{sT3}, s{sT3}, s{sPT}
    s_mul_i32 s{sT}, s{sT3}, 3072
    s_add_u32 s{sT}, s{sT}, {WS_KV}
    v_cvt_pk_bf16_f32 v64, v{KVr}, v{KVr+1}
    v_cvt_pk_bf16_f32 v65, v{KVr+2}, v{KVr+3}
    s_cmp_ge_u32 s{sCG}, 6
    s_cbranch_scc1 {N}_c67
    s_cmp_eq_u32 s{sG3}, 2
    s_cselect_b32 exec_lo, 0, -1
    s_cmp_ge_u32 s{sCG}, 3
    s_cbranch_scc1 {N}_v
    s_lshl_b32 s{sT2}, s{sCG}, 9
    s_add_u32 s{sT}, s{sT}, s{sT2}
    v_lshl_add_u32 v66, v{vH}, 3, v{aX}
    s_cmp_eq_u32 s{sCG}, 2
    s_cselect_b64 vcc, -1, 0
    v_mul_f32 v67, v{KVr}, v{KVr}
    v_cndmask_b32 v66, v66, v{aX+1}, vcc
    v_fmac_f32 v67, v{KVr+1}, v{KVr+1}
    buffer_store_dwordx2 v[64:65], v66, {WS}, s{sT} offen
    v_fmac_f32 v67, v{KVr+2}, v{KVr+2}
    v_fmac_f32 v67, v{KVr+3}, v{KVr+3}
    s_not_b64 exec, exec
    v_mov_b32 v67, 0
    s_mov_b64 exec, -1
    v_mov_b32 v68, v67
    s_nop 1
    v_permlane32_swap_b32 v67, v68
    v_add_f32 v67, v67, v68""")
    for st in ("quad_perm:[1,0,3,2]", "quad_perm:[2,3,0,1]", "row_half_mirror", "row_mirror"):
        a(f"s_nop 1\nv_max_f32_dpp v67, v67, v67 {st} row_mask:0xf bank_mask:0xf")
    a(f"""v_mov_b32 v68, v67
    s_lshl_b32 s{sT}, s{sCG}, 6
    s_add_u32 s{sT}, s{sT}, s{sT3}
    v_permlane16_swap_b32 v67, v68
    s_lshl_b32 s{sT}, s{sT}, 2
    s_add_u32 s{sT}, s{sT}, {WS_KMAX}
    v_max_f32 v67, v67, v68
    v_mov_b32 v68, 0
    s_mov_b64 exec, 1
    buffer_store_dword v67, v68, {WS}, s{sT} offen
    s_endpgm
    {N}_v:
    s_lshl_b32 s{sT2}, s{sG3}, 7
    s_min_u32 s{sT2}, s{sT2}, 192
    s_add_u32 s{sT}, s{sT}, s{sT2}
    v_lshrrev_b32 v66, 3, v{vPos}
    v_mul_u32_u24 v66, 384, v66
    v_and_b32 v67, 7, v{vPos}
    v_lshl_add_u32 v66, v67, 1, v66
    v_lshl_add_u32 v66, v{vH}, 6, v66
    buffer_store_short v64, v66, {WS}, s{sT} offen offset:1536
    buffer_store_short_d16_hi v64, v66, {WS}, s{sT} offen offset:1552
    buffer_store_short v65, v66, {WS}, s{sT} offen offset:1568
    buffer_store_short_d16_hi v65, v66, {WS}, s{sT} offen offset:1584
    s_endpgm
    {N}_c67:
    s_cmp_eq_u32 s{sCG}, 7
    s_cbranch_scc1 {N}_g
    v_lshlrev_b32 v66, 2, v0
    v_and_b32 v67, 1, v0
    v_mov_b32 v64, 0x3f803f80
    v_cmp_eq_u32 vcc, 0, v67
    v_mov_b32 v65, 0x3f80
    v_lshrrev_b32 v68, 4, v0
    v_cndmask_b32 v65, v65, v64, vcc
    v_and_b32 v67, 15, v0
    buffer_store_dword v65, v66, {WS}, s{sT} offen offset:1280
    v_cmp_gt_u32 vcc, 4, v67
    v_mul_u32_u24 v68, 384, v68
    v_lshl_add_u32 v68, v67, 2, v68
    v_cndmask_b32 v64, 0, v64, vcc
    buffer_store_dword v64, v68, {WS}, s{sT} offen offset:{1536+320}
    s_endpgm
    {N}_g:
    v_mov_b32 v64, v{ACC+12}
    s_lshl_b32 s{sT}, s{sT3}, 7
    s_add_u32 s{sT}, s{sT}, {WS_GATE}
    v_permlane32_swap_b32 v64, v{ACC+12}
    v_add_f32 v64, v64, v{ACC+12}
    v_mul_f32 v64, {fb(-1.4426950408889634)}, v64
    v_exp_f32 v64, v64
    v_lshlrev_b32 v66, 2, v{vPos}
    v_add_f32 v64, 1.0, v64
    v_rcp_f32 v64, v64
    s_mov_b32 exec_hi, 0
    buffer_store_dword v64, v66, {WS}, s{sT} offen
    s_endpgm""")
    return a, (N, 256, 512, LP_END, 128)
```

```python
import sys, json
from gen import build
from kP import gen_P
from kN import gen_N
from kA import gen_A
from kO import gen_O
from chk import check
from common import NAME
opt = json.loads(sys.argv[1]) if len(sys.argv) > 1 else {}
out = sys.argv[2] if len(sys.argv) > 2 else "cdna_kernels/" + NAME + ".s"
t = build(opt, [gen_P, gen_N, gen_A, gen_O])
if check(t): open(out, "w").write(t); print("wrote", out, len(t))
```

```python
import sys, json
from gen import build
from common import *
from kP import gen_P
from kN import gen_N
from kA import gen_A
from kO import gen_O
from chk import check
def gen_T(opt):
    a = Asm(); N = "triv_kernel"
    kernel_head(a, N, 256)
    a("s_endpgm")
    return a, (N, 256, 64, 0, 8)
G = dict(P=gen_P, N=gen_N, A=gen_A, O=gen_O, T=gen_T)
opt = {"gsched": [2]*16}
for s in sys.argv[1:]:
    t = build(opt, [G[c] for c in s])
    if check(t): open(f"x_{s}.s", "w").write(t)
```

```python
from common import *
def mk_spin(A, B, M=10, wg=37):
    def gen(opt):
        a = Asm(); N = "meas_kernel"
        kernel_head(a, N, 1)
        off = lambda x: WS_TS + x[0]*0x40000 + (wg*16 + x[1])*64 + x[2]*4
        a(f"""s_load_dwordx2 s[4:5], s[0:1], {KA['ws']}
        s_memrealtime s[10:11]
        s_waitcnt lgkmcnt(0)
        s_add_u32 s6, s4, {off(A)}
        s_addc_u32 s7, s5, 0
        s_add_u32 s4, s4, {off(B)}
        s_addc_u32 s5, s5, 0
        s_load_dword s8, s[6:7], 0
        s_load_dword s9, s[4:5], 0
        s_waitcnt lgkmcnt(0)
        s_sub_u32 s8, s9, s8
        s_min_u32 s8, s8, 10000
        s_mul_i32 s8, s8, {M}
        {N}_l:
        s_memrealtime s[12:13]
        s_waitcnt lgkmcnt(0)
        s_sub_u32 s12, s12, s10
        s_cmp_lt_u32 s12, s8
        s_cbranch_scc1 {N}_l
        s_endpgm""")
        return a, (N, 1, 64, 0, 8)
    return gen
```

```python
import sys, json
from gen import build
from common import *
from kP import gen_P
from kN import gen_N
from kA import gen_A
from kO import gen_O
from chk import check
from spin import mk_spin
opt = {"gsched": [2]*16, "ts": 1}
iv = [((0,0,0),(0,0,0)), ((0,0,0),(3,0,2)), ((0,0,0),(0,0,2)), ((0,0,2),(2,0,0)), ((2,0,0),(2,0,3)), ((3,0,0),(3,0,2))]
for i, (A, B) in enumerate(iv):
    t = build(opt, [gen_P, gen_N, gen_A, gen_O, mk_spin(A, B)])
    if check(t): open(f"s_{i}.s", "w").write(t)
```

```python
from kM import *
from kP import QS
LA, LC, LD = 20480, 131072, 159744
CS_, BS_ = 7168, 12288
F_A, F_G, L_KM, L_GT = LD, LD + 16, LD + 64, LD + 256
WS_EP, WS_KVF, WS_ZF, WS_UF, WS_GF, WS_ST = 0x30000, 0x31000, 0x32000, 0x34000, 0x38000, 0x300000
sWS, sX = 8, 12
sRB, sCG, sW, sN, sT, sT2, sT3, sC = range(40, 48)
WS = f"s[{sWS}:{sWS+3}]"; XS = f"s[{sX}:{sX+3}]"
S4 = lambda s: f"s[{s}:{s+3}]"

def ts(a, opt, k, clk=False):
    if opt.get("ts"): a(f"s_mem{'' if clk else 'real'}time s[{64+2*k}:{65+2*k}]")
def ts_dump(a, opt, role):
    if not opt.get("ts"): return
    a("s_waitcnt lgkmcnt(0)")
    for k in range(16): a(f"v_writelane_b32 v1, s{64+2*k}, {k}")
    a(f"""s_lshl_b32 s{sT}, s2, 4
    s_add_u32 s{sT}, s{sT}, s{sW}
    s_lshl_b32 s{sT}, s{sT}, 6
    s_add_u32 s{sT}, s{sT}, {WS_TS + role*256}
    v_lshlrev_b32 v2, 2, v0
    s_mov_b64 exec, 0xffff
    buffer_store_dword v1, v2, {WS}, s{sT} offen""")

def sigma(a, d, t, mask):
    a(f"""v_and_b32 v{d}, {mask & ~12}, v0
    v_bfe_u32 v{t}, v0, 2, 1
    v_lshl_or_b32 v{d}, v{t}, 3, v{d}
    v_bfe_u32 v{t}, v0, 3, 1
    v_lshl_or_b32 v{d}, v{t}, 2, v{d}""")
def div(a, d, i, magic):
    if i: a(f"v_add_u32 v{d}, {64*i}, v0")
    a(f"v_mul_u32_u24 v{d}, {magic}, v{d if i else 0}\nv_lshrrev_b32 v{d}, 16, v{d}")
def tr160(a, d, t, sBase):
    a(f"""v_bfe_u32 v{d}, v0, 2, 3
    v_lshrrev_b32 v{t}, 5, v0
    v_lshl_or_b32 v{d}, v{t}, 4, v{d}
    v_and_b32 v{t}, 3, v0
    v_lshl_add_u32 v{d}, v{d}, 2, v{t}
    v_mad_u32_u24 v{d}, v{d}, 40, s{sBase}""")
def poll(a, loads, tags, sM=None):
    L = lbl("poll")
    a(f"s_movk_i32 s{sC}, 0x4000\n{L}:")
    for l in loads: a(l)
    a(f"s_sub_u32 s{sC}, s{sC}, 1\ns_cbranch_scc1 {L}_x\ns_waitcnt vmcnt(0)")
    if len(tags) == 4:
        a(f"""v_xor_b32 v{tags[0]}, s{sN}, v{tags[0]}
        v_xor_b32 v{tags[1]}, s{sN}, v{tags[1]}
        v_xor_b32 v{tags[2]}, s{sN}, v{tags[2]}
        v_xor_b32 v{tags[3]}, s{sN}, v{tags[3]}
        v_or3_b32 v{tags[0]}, v{tags[0]}, v{tags[1]}, v{tags[2]}
        v_or_b32 v{tags[0]}, v{tags[0]}, v{tags[3]}
        v_cmp_ne_u32 vcc, 0, v{tags[0]}""")
    else: a(f"v_cmp_ne_u32 vcc, s{sN}, v{tags[0]}")
    a(f"s_cbranch_vccnz {L}\n{L}_x:\ns_waitcnt vmcnt(0)")
    a.vmq = []
def flag(a, vZ, vP, sOff):
    a(f"v_mov_b32 v{vZ}, 0\nv_mov_b32 v{vP}, s{sN}\ns_mov_b64 exec, 1")
    a.vm(f"buffer_store_dword v{vP}, v{vZ}, {WS}, s{sOff} offen sc1", "fl")
    a("s_mov_b64 exec, -1")
def xsum(a, x, t, op="v_add_f32"):
    for p in ("32", "16"):
        for r, q in zip(x, t): a(f"v_mov_b32 v{q}, v{r}")
        a("s_nop 1" if len(x) == 1 else "s_nop 0")
        for r, q in zip(x, t): a(f"v_permlane{p}_swap_b32 v{r}, v{q}")
        for r, q in zip(x, t): a(f"{op} v{r}, v{r}, v{q}")
def rowmax(a, x):
    for st in ("quad_perm:[1,0,3,2]", "quad_perm:[2,3,0,1]", "row_half_mirror", "row_mirror"):
        a(f"s_nop 1\nv_max_f32_dpp v{x}, v{x}, v{x} {st} row_mask:0xf bank_mask:0xf")
def red20(a, ACC, st, vL, vA, vFA, vFW, vP, phase, gate):
    for rho in range(4): a(f"s_xor_b32 s{sT}, s{sW}, {rho}\ns_mul_i32 s{sT}, s{sT}, {LA}\nv_add_u32 v{vA+rho}, s{sT}, v{vL}")
    yield
    for rho in (1, 2, 3):
        for t in range(5): a.lg(f"ds_write_b128 v{vA}, {R(ACC+rho*st+4*t,4)} offset:{(rho-1)*6144+t*1024}", "rw")
        if gate: a.lg(f"ds_write_b32 v{vA}, v{ACC+rho*st+20} offset:{(rho-1)*6144+5120}", "rw")
    sb_arrive(a, vFA, vP, phase); sb_wait(a, vFW, vP, phase, sC)
    for rho in (1, 2, 3):
        for t in range(5): a.lg(f"ds_read_b128 {R(ACC+rho*st+4*t,4)}, v{vA+rho} offset:{(rho-1)*6144+t*1024}", f"r{rho}")
        if gate: a.lg(f"ds_read_b32 v{ACC+rho*st+20}, v{vA+rho} offset:{(rho-1)*6144+5120}", f"r{rho}")
    for rho in (1, 2, 3):
        a.lgwait(f"r{rho}")
        for e in range(0, 20, 2): a(f"v_pk_add_f32 {R(ACC+e,2)}, {R(ACC+e,2)}, {R(ACC+rho*st+e,2)}")
        if gate: a(f"v_add_f32 v{ACC+20}, v{ACC+20}, v{ACC+rho*st+20}")

def gen_att(a, opt, N):
    sWQ, sKV, sGW = 16, 20, 24
    sCw, sTile, sKB, sRot, sKo, sVo = range(48, 54); sMV, sY, sU = 54, 56, 60
    r = AttR(8); T = r.T
    vCW, vCR, vFA, vFW = 248, 251, 254, 255
    L16, aX, aW, aWr, P = 1, 2, 3, 4, 5
    RAW, GF, ACC, XF = 6, 106, 126, 222
    XK, WK, D, PK, TK, oQ = 8, 28, 132, 140, 144, 126
    srd(a, sKV, "wk", sT); a(f"s_load_dwordx2 s[4:5], s[0:1], {KA['wv']}"); srd(a, sWQ, "wq", sT); srd(a, sGW, "gate", sT)
    wg_map(a, sRB, sCG, opt.get("map", "8x4"), sT)
    sigma(a, 6, 7, 15)
    a(f"""s_bitcmp1_b32 s{sCG}, 0
    s_cselect_b64 vcc, -1, 0
    v_and_b32 v7, 15, v0
    v_lshrrev_b32 v{TK}, 4, v0
    v_cndmask_b32 v6, v7, v6, vcc
    v_lshlrev_b32 v{L16}, 4, v0
    v_mul_u32_u24 v6, 1280, v6
    v_lshl_add_u32 v6, v{TK}, 4, v6
    s_mul_i32 s{sCw}, s{sW}, {CS_}
    s_add_u32 s{sCw}, s{sCw}, {LC}
    s_lshl_b32 s{sT}, s{sRB}, 2
    s_lshr_b32 s{sT2}, s{sCG}, 1
    s_add_u32 s{sTile}, s{sT}, s{sT2}
    s_mul_i32 s{sT}, s{sTile}, {16*1280}
    s_mul_i32 s{sT2}, s{sW}, 320
    s_add_u32 s{sT3}, s{sT}, s{sT2}
    s_mul_i32 s{sT}, s{sW}, 6400
    s_add_u32 s{sT2}, s{sT}, 4096
    s_mov_b32 m0, s{sCw}
    s_bitcmp1_b32 s{sCG}, 0
    s_waitcnt lgkmcnt(0)
    s_cselect_b32 s{sKV}, s4, s{sKV}
    s_cselect_b32 s{sKV+1}, s5, s{sKV+1}
    s_load_dword s{sN}, s[{sWS}:{sWS+1}], {WS_EP}""")
    for s in range(5): a.vm(f"buffer_load_dwordx4 {R(XK+4*s,4)}, v6, {XS}, s{sT3} offen offset:{64*s}", "kv")
    for i in range(7):
        if i == 4: a(f"s_add_u32 m0, s{sCw}, 4096\ns_nop 0")
        a.vm(f"buffer_load_dwordx4 v{L16}, {S4(sKV)}, s{sT if i < 4 else sT2} offen offset:{(i&3)*1024} lds", "kv")
    a("s_barrier")
    ts(a, opt, 1)
    a(f"""v_bfe_u32 v7, v0, 2, 2
    v_lshl_or_b32 v7, v{TK}, 3, v7
    v_mad_u32_u24 v7, v7, 40, s{sCw}
    v_and_b32 v{P}, 1, v0
    v_lshl_add_u32 v7, v{P}, 3, v7
    v_bfe_u32 v{P}, v0, 1, 1
    v_lshl_add_u32 v7, v{P}, 5, v7
    v_add_u32 v{aWr}, s{sCw}, v{L16}
    v_sub_u32 v{TK+1}, 0, v{TK}
    v_and_b32 v{TK+1}, 3, v{TK+1}
    v_lshlrev_b32 v{oQ+5}, 4, v{TK+1}
    v_bfe_u32 v{P}, v0, 2, 2
    v_xor_b32 v{TK+1}, v{TK+1}, v{P}
    v_and_b32 v{P}, 15, v0
    v_mul_u32_u24 v{P}, 320, v{P}
    v_lshl_add_u32 v{aX}, v{TK+1}, 4, v{P}
    s_mul_i32 s{sT}, s{sW}, {LA}
    v_add_u32 v{aX}, s{sT}, v{aX}
    s_lshl_b32 s{sT}, s{sW}, 2
    s_add_u32 s{sT}, s{sT}, {F_A}
    v_mov_b32 v{vFA}, s{sT}
    v_and_b32 v{vFW}, 3, v0
    v_lshlrev_b32 v{vFW}, 2, v{vFW}
    v_add_u32 v{vFW}, {F_A}, v{vFW}
    s_movk_i32 s{sT}, 1280""")
    tr160(a, aW, P, sCw)
    for i in range(5):
        q = TK + 1
        div(a, q, i, 6554)
        a(f"""v_mul_u32_u24 v{q+1}, 160, v{q}
        v_bfe_u32 v{q+2}, v{q}, 2, 1
        v_sub_u32 v{q+1}, v{L16}, v{q+1}
        v_mul_u32_u24 v{q+2}, 28, v{q+2}
        v_bfe_u32 v{P}, v{q}, 3, 1
        v_xor_b32 v{q}, v{q}, v{q+2}
        v_mul_u32_u24 v{P}, 12, v{P}
        v_add_u32 v{q+1}, {1024*i}, v{q+1}
        v_xor_b32 v{q}, v{q}, v{P}
        v_mad_u32_u24 v{oQ+i}, v{q}, s{sT}, v{q+1}""")
    a.vmwait("kv")
    ts(a, opt, 2)
    for s in range(5):
        for t in range(2):
            for e in range(2): a.lg(f"ds_read_b64_tr_b16 {R(WK+8*s+4*t+2*e,2)}, v7 offset:{s*1280+e*160+t*16}", f"k{s}")
    a(f"s_bitcmp1_b32 s{sCG}, 0\ns_cbranch_scc1 {N}_kvv")
    q0 = list(a.lgq)
    for isv in range(2):
        a.lgq = list(q0)
        for s in range(5):
            a.lgwait(f"k{s}")
            for t in range(2):
                x, w = R(XK+4*s, 4), R(WK+8*s+4*t, 4)
                a(f"v_mfma_f32_16x16x32_bf16 {R(D+4*t,4)}, {x if isv else w}, {w if isv else x}, {R(D+4*t,4) if s else 0}")
        a(f"s_branch {N}_kvj\n{N}_kvv:" if isv == 0 else f"{N}_kvj:")
    G0, GA = PK + 4, PK + 6
    a(f"""s_add_u32 s{sN}, s{sN}, 0x9e3779b1
    s_mul_i32 s{sT3}, s{sW}, {160*1280}
    s_mul_i32 s{sT2}, s{sCG}, 160
    s_add_u32 s{sT3}, s{sT3}, s{sT2}
    v_mov_b32 v{G0}, 0
    v_mov_b32 v{G0+1}, s{sN}
    v_mov_b32 v{GA}, {BIG}
    s_nop 1""")
    for t in range(2): a.lg(f"ds_write_b128 v{aWr}, {R(D+4*t,4)} offset:{5120+t*1024}", "w")
    sb_arrive(a, vFA, P, 1)
    a(f"s_cmp_lg_u32 s{sW}, 0\ns_cbranch_scc1 {N}_wq")
    X = GA + 1
    a(f"""s_lshr_b32 s{sT}, s{sTile}, 1
    s_mul_i32 s{sT}, s{sT}, {KVT}
    s_and_b32 s{sT2}, s{sTile}, 1
    v_and_b32 v{X}, 15, v0
    v_bfe_u32 v{X+1}, v0, 4, 1
    v_mov_b32 v{GA}, 0""")
    sb_wait(a, vFW, P, 1, sC)
    for w in (1, 2, 3):
        for t in range(2): a.lg(f"ds_read_b128 {R(WK+8*w+4*t,4)}, v{aWr} offset:{w*CS_+5120+t*1024}", f"p{w}")
    for w in (1, 2, 3):
        a.lgwait(f"p{w}")
        for e in range(0, 8, 2): a(f"v_pk_add_f32 {R(D+e,2)}, {R(D+e,2)}, {R(WK+8*w+e,2)}")
    for e in range(4): a(f"v_cvt_pk_bf16_f32 v{PK+e}, v{D+2*e}, v{D+2*e+1}")
    a(f"""s_bitcmp1_b32 s{sCG}, 0
    s_cbranch_scc0 {N}_kfin
    s_mul_i32 s{sT2}, s{sT2}, 640
    s_add_u32 s{sT}, s{sT}, s{sT2}
    v_lshrrev_b32 v{X+2}, 2, v0
    v_or_b32 v{X+2}, v{X+2}, v0
    v_and_b32 v{X+2}, 8, v{X+2}
    v_add_u32 v{X}, v{X}, v{X+2}
    v_mul_u32_u24 v{X+1}, 320, v{X+1}
    v_permlane32_swap_b32 v{PK}, v{PK+2}
    v_permlane32_swap_b32 v{PK+1}, v{PK+3}
    v_lshl_add_u32 v{X}, v{X}, 4, v{X+1}
    s_mov_b32 exec_lo, 0x0fff0fff
    s_mov_b32 exec_hi, 0x00ff00ff
    buffer_store_dwordx4 {R(PK,4)}, v{X}, {WS}, s{sT} offen offset:1280 sc1
    s_mov_b64 exec, -1
    s_branch {N}_wq
    {N}_kfin:
    s_lshl_b32 s{sT2}, s{sT2}, 4
    v_add_u32 v{X}, s{sT2}, v{X}
    v_lshl_add_u32 v{X+1}, v{X+1}, 5, v{X}
    v_lshlrev_b32 v{X}, 3, v{X}
    v_lshlrev_b32 v{X+1}, 4, v{X+1}
    s_mov_b32 exec_hi, 0
    buffer_store_dwordx4 {R(PK,4)}, v{X+1}, {WS}, s{sT} offen sc1
    v_mul_f32 v{G0}, v{D+4}, v{D+4}
    v_fmac_f32 v{G0}, v{D+5}, v{D+5}
    v_fmac_f32 v{G0}, v{D+6}, v{D+6}
    v_fmac_f32 v{G0}, v{D+7}, v{D+7}
    s_mov_b32 exec_lo, 0
    s_mov_b32 exec_hi, 0xffff
    buffer_store_dwordx2 {R(PK,2)}, v{X}, {WS}, s{sT} offen offset:1024 sc1
    s_mov_b32 exec_lo, -1""")
    for e in range(4): a(f"v_fmac_f32 v{G0}, v{D+e}, v{D+e}")
    a("s_mov_b64 exec, -1")
    a.label(f"{N}_wq"); a.lgq = []; a.vmq = ["st"]
    a(f"s_mul_i32 s{sT}, s{sW}, 320")
    for s in range(5):
        for i in range(5): a.vm(f"buffer_load_dwordx4 {R(RAW+20*s+4*i,4)}, v{oQ+i}, {S4(sWQ)}, s{sT3} offen", f"q{s}")
        a.vm(f"buffer_load_dwordx4 {R(GF+4*s,4)}, v{oQ+5}, {S4(sGW)}, s{sT} offen offset:{64*s}", f"q{s}")
        if s < 4: a(f"s_add_u32 s{sT3}, s{sT3}, {32*1280}")
    xsum(a, [G0], [X]); rowmax(a, G0)
    a(f"""s_lshl_b32 s{sT}, s{sRB}, 3
    s_add_u32 s{sT}, s{sT}, s{sCG}
    s_lshl_b32 s{sT}, s{sT}, 3
    s_add_u32 s{sT}, s{sT}, {WS_KVF}
    s_mov_b64 exec, 1""")
    a.vmwait("st")
    a.vm(f"buffer_store_dwordx2 {R(G0,2)}, v{GA}, {WS}, s{sT} offen sc1", "gr")
    a("s_mov_b64 exec, -1")
    ts(a, opt, 3)
    sb_wait(a, vFA, P, 1, sC, off=16)
    def ds(s):
        for p in range(4): a.lg(f"ds_read_b128 {R(XF+16*(s&1)+4*p,4)}, v{aX} offset:{p*5120+s*64}", f"x{s}")
        a.vmwait(f"q{s}")
        for i in range(5): a.lg(f"ds_write_b128 v{aWr}, {R(RAW+20*s+4*i,4)} offset:{i*1024}", "w")
        for t in range(5):
            for e in range(2): a.lg(f"ds_read_b64_tr_b16 {R(RAW+20*s+4*t+2*e,2)}, v{aW} offset:{e*1280+t*8}", f"t{s}{t}")
    ds(0)
    red = red20(a, ACC, 24, L16, GF, vFA, vFW, P, 2, True)
    for s in range(5):
        for t in (5, 0, 1, 2, 3, 4):
            a.lgwait(f"x{s}" if t == 5 else f"t{s}{t}")
            if t == opt.get("qds", 2) and s < 4:
                a.lgwait(f"t{s}4"); ds(s + 1)
            if t == 2 and s == 4: next(red)
            for p in range(4):
                d = R(ACC + 24*p + 4*t, 4)
                a(f"v_mfma_f32_16x16x32_bf16 {d}, {R(GF+4*s if t == 5 else RAW+20*s+4*t,4)}, {R(XF+16*(s&1)+4*p,4)}, {d if s else 0}")
    ts(a, opt, 4)
    att_consts(a, r, sMV, zero=False)
    for _ in red: pass
    ts(a, opt, 5)
    Q = XF; X = XF + 12
    a(f"""s_mov_b32 s{sU}, {fb(QS)}
    v_mul_f32 v{ACC+20}, {fb(-1.4426950408889634)}, v{ACC+20}
    s_lshr_b32 s{sT}, s{sW}, 1
    s_mul_i32 s{sT}, s{sT}, 1536
    s_add_u32 s{sT}, s{sT}, {LC}
    s_and_b32 s{sT2}, s{sW}, 1
    s_lshl_b32 s{sT2}, s{sT2}, 4
    v_exp_f32 v{ACC+20}, v{ACC+20}
    v_lshrrev_b32 v{X}, 4, v0
    v_and_b32 v{X+1}, 15, v0
    v_mul_u32_u24 v{X}, 3072, v{X}
    v_add_u32 v{X+2}, s{sT2}, v{X+1}
    v_add_u32 v{X}, s{sT}, v{X}
    v_add_f32 v{ACC+20}, 1.0, v{ACC+20}
    s_lshl_b32 s{sT}, s{sW}, 6
    s_add_u32 s{sT}, s{sT}, {L_GT}
    v_lshl_add_u32 v{X+3}, v{X+1}, 2, s{sT}
    v_rcp_f32 v{ACC+20}, v{ACC+20}
    v_lshl_add_u32 v{X+1}, v{X+2}, 3, v{X}
    v_lshl_add_u32 v{X}, v{X+2}, 4, v{X}""")
    for e in range(0, 20, 2): a(f"v_pk_mul_f32 {R(ACC+e,2)}, {R(ACC+e,2)}, s[{sU}:{sU+1}] op_sel_hi:[1,0]")
    a.lg(f"ds_write_b32 v{X+3}, v{ACC+20}", "w")
    a(f"v_pk_mul_f32 {R(Q+10,2)}, {R(ACC,2)}, {R(ACC,2)}")
    for e in range(2, 20, 2): a(f"v_pk_fma_f32 {R(Q+10,2)}, {R(ACC+e,2)}, {R(ACC+e,2)}, {R(Q+10,2)}")
    for t in range(5):
        for e in range(2): a(f"v_cvt_pk_bf16_f32 v{Q+(0,4,2,6,8)[t]+e}, v{ACC+4*t+2*e}, v{ACC+4*t+2*e+1}")
    a(f"""v_add_f32 v{Q+10}, v{Q+10}, v{Q+11}
    v_mov_b32 v{Q+11}, 0
    v_sqrt_f32 v{Q+10}, v{Q+10}""")
    a.lg(f"ds_write_b128 v{X}, {R(Q,4)}", "w")
    a.lg(f"ds_write_b128 v{X}, {R(Q+4,4)} offset:512", "w")
    a.lg(f"ds_write_b64 v{X+1}, {R(Q+8,2)} offset:1024", "w")
    a.lg(f"ds_write_b64 v{X+1}, {R(Q+10,2)} offset:1280", "w")
    QA = r.S[0]
    a(f"""s_mul_i32 s{sKB}, s{sW}, {16*KVT}
    s_and_b32 s{sRot}, s{sRB}, {opt.get('rot', 16) - 1}
    s_mul_i32 s{sRot}, s{sRot}, {KVT}
    s_and_b32 s{sT3}, s{sW}, 1
    s_lshl_b32 s{sT}, s{sT3}, 7
    s_add_u32 s{sT}, s{sT}, {L_GT}
    v_and_b32 v{T}, 31, v0
    v_lshl_add_u32 v{QA+8}, v{T}, 2, s{sT}""")
    for rho in range(4):
        a(f"""s_xor_b32 s{sT}, s{sW}, {rho}
        s_mul_i32 s{sT2}, s{sT}, 1536
        s_mul_i32 s{sT}, s{sT}, 18432
        s_add_u32 s{sT2}, s{sT2}, {LC}
        s_add_u32 s{sT}, s{sT}, {LB}
        v_add_u32 v{QA+2*rho}, s{sT2}, v{r.L16}
        v_add_u32 v{QA+2*rho+1}, s{sT2}, v{r.K2a}
        v_add_u32 v{vCR+rho-1 if rho else vCW}, s{sT}, v{r.L16}""")
    a(f"""s_lshl_b32 s{sT}, s{sRB}, 3
    s_and_b32 s{sT2}, s{sCG}, 6
    s_add_u32 s{sT}, s{sT}, s{sT2}
    s_lshl_b32 s{sTile}, s{sT}, 6
    s_add_u32 s{sT}, s{sT}, s{sT3}
    s_mul_i32 s{sT}, s{sT}, {22*1024}
    s_add_u32 s{sT}, s{sT}, {WS_Y2}
    s_and_b32 s{sT2}, s{sCG}, 1
    s_lshl_b32 s{sY+1}, s{sT2}, 10
    s_lshl_b32 s{sY}, s{sT2}, 12
    s_lshl_b32 s{sT2}, s{sT2}, 2
    s_add_u32 s{sT2}, s{sT2}, s{sW}
    s_lshl_b32 s{sT2}, s{sT2}, 2
    s_add_u32 s{sTile}, s{sTile}, s{sT2}
    s_add_u32 s{sTile}, s{sTile}, {WS_GF}
    s_lshr_b32 s{sT2}, s{sW}, 1
    s_lshl_b32 s{sT3}, s{sT2}, 10
    s_add_u32 s{sY}, s{sY}, s{sT3}
    s_add_u32 s{sY}, s{sY}, s{sT}
    s_lshl_b32 s{sT3}, s{sT2}, 3
    s_add_u32 s{sY+1}, s{sY+1}, s{sT3}
    s_add_u32 s{sY+1}, s{sY+1}, s{sT}
    s_add_u32 s{sY+1}, s{sY+1}, 8192
    s_add_u32 s{sY+2}, s{sY}, 2048
    s_add_u32 s{sY+3}, s{sY+1}, 512
    s_lshl_b32 s{sT}, s{sW}, 9
    s_add_u32 s{sT}, s{sT}, {WS_KVF}""")
    ts(a, opt, 6)
    poll(a, [f"buffer_load_dwordx2 {R(T,2)}, v{r.K2a}, {WS}, s{sT} offen sc1"], [T + 1])
    ts(a, opt, 7)
    v8 = vCW + 1
    loop = att_loop(a, opt, N, r, WS, sKB, sRot, sKo, sVo, sC, sMV, vCW, vFA, 7, pre=(v8, 6))
    next(loop)
    xsum(a, [T], [T + 1], "v_max_f32"); rowmax(a, T)
    a.lg(f"ds_write_b32 v{vFA}, v{T} offset:{L_KM - F_A}", "w")
    sb_arrive(a, vFA, T + 1, 3)
    att_zero(a, r)
    a(f"""v_and_b32 v{v8}, 7, v0
    v_lshlrev_b32 v{v8}, 2, v{v8}
    v_add_u32 v{v8}, {F_A}, v{v8}""")
    sb_wait(a, vFW, T + 1, 3, sC)
    a.lg(f"ds_read_b32 v{T}, v{vFW} offset:{L_KM - F_A}", "km")
    for i in range(8):
        rho, hp = (1, 2, 3, 0)[i >> 1], i & 1
        a.lg(f"ds_read_b64 {R(r.Q[i]+4,2)}, v{QA+2*rho+1} offset:{hp*6144+1024}", f"q{i}")
    for i in range(8):
        rho, hp = (1, 2, 3, 0)[i >> 1], i & 1
        a.lg(f"ds_read_b128 {R(r.Q[i],4)}, v{QA+2*rho} offset:{hp*6144}", "q")
    a.lg(f"ds_read_b32 v{r.G}, v{QA+8}", "q")
    a.lgwait("km")
    for st in ("quad_perm:[1,0,3,2]", "quad_perm:[2,3,0,1]"):
        a(f"v_max_f32_dpp v{T}, v{T}, v{T} {st} row_mask:0xf bank_mask:0xf\ns_nop 1")
    a(f"v_sqrt_f32 v{T}, v{T}\ns_nop 0\nv_mul_f32 v{T}, {fb(-1.008)}, v{T}")
    a.lgwait("q7")
    a("s_mov_b32 exec_lo, 0")
    for i in range(8): a(f"v_mul_f32 v{r.Q[i]+4}, v{T}, v{r.Q[i]+4}")
    for i in range(8): a(f"v_lshrrev_b32 v{r.Q[i]+4}, 16, v{r.Q[i]+4}")
    if opt.get("force_fb"):
        for i in range(8): a(f"v_mov_b32 v{r.Q[i]+4}, 0xc396")
    a("s_mov_b32 exec_lo, -1")
    a.lgwait_all()
    sb_arrive(a, vFA, T + 1, 6)
    if opt.get("prioA"): a(f"s_setprio {opt['prioA']}")
    ts(a, opt, 8); ts(a, opt, 14, True)
    for _ in loop: pass
    ts(a, opt, 9); ts(a, opt, 15, True)
    sb_wait(a, vFW, T, 7, sC)
    for n, i in enumerate((6, 7)):
        att_finish(a, f"{N}_{n}", r, i, [(vCR + p, (2*p + n) * 3072) for p in range(3)], WS, sY + 2*n, sY + 2*n + 1, sU, "sc1")
    ts(a, opt, 10)
    a.vmwait_all()
    flag(a, T, T + 1, sTile)
    ts(a, opt, 11)
    ts_dump(a, opt, 0)
    a("s_endpgm")
    a.label(f"{N}_pre"); sb_wait(a, v8, T, 6, sC); a(f"s_branch {N}_preb")
    for n, i in enumerate((6, 7)): att_fallback(a, f"{N}_{n}_fb", r, i, WS, sT, sMV, "sc1", f"{N}_{n}_fin")

from kFG import gen_g
def gen_F(opt):
    opt = dict(opt)
    a = Asm(); N = NAME + "_kernel"
    kernel_head(a, N, 256)
    ts(a, opt, 0)
    srd(a, sWS, "ws", sT); srd(a, sX, "x", sT)
    a(f"""v_lshrrev_b32 v1, 6, v0
    v_and_b32 v0, 63, v0
    v_readfirstlane_b32 s{sW}, v1
    s_cmp_ge_u32 s{sW}, 4
    s_cbranch_scc1 F_G""")
    gen_att(a, opt, "A")
    a(".p2align 6"); a.label("F_G"); a.vmq = []; a.lgq = []
    gen_g(a, opt, "G")
    return a, (N, 256, 512, 163840, 256)
```

```python
from kF import *
def gen_g(a, opt, N):
    sWI, sSP, sBS, sWO, sWU, sOUT = 16, 20, 24, 28, 32, 36
    sLG, sZ0, sI, sZ, sM, sD = range(48, 54); sW0, sWp, sG = 54, 56, 58
    sRing, sZo = 60, 61
    g = GR; L16x, aW, P, ACC, XF, WF, Z = 1, 2, 3, 16, 112, [192, 204], 216
    oZ, vRow, aR, vB, vFA, vFW = 240, 243, 244, 248, 254, 255
    pv = opt.get("pv", 0)
    def prio(on):
        if pv: a(f"s_setprio {pv if on else 0}")
    srd(a, sWI, "w_in", sT)
    a(f"""v_lshlrev_b32 v2, 2, v0
    v_add_u32 v2, {LD}, v2
    v_mov_b32 v3, 0
    ds_write_b32 v2, v3
    s_sub_u32 s{sW}, s{sW}, 4""")
    for s_, n in ((sSP, "w_sp"), (sBS, "b_sp"), (sWO, "wo"), (sWU, "w_out"), (sOUT, "out")): srd(a, s_, n, sT)
    wg_map(a, sRB, sCG, opt.get("map", "8x4"), sT)
    oX = ACC; t = ACC + 8
    a(f"s_movk_i32 s{sT}, 960")
    for i in range(5):
        div(a, t, i, 3277)
        a(f"""v_bfe_u32 v{t+1}, v{t}, 2, 2
        v_xor_b32 v{t+1}, v{t+1}, v0
        v_lshlrev_b32 v{t+1}, 4, v{t+1}
        v_mad_u32_u24 v{oX+i}, v{t}, s{sT}, v{t+1}""")
    a(f"""s_mul_i32 s{sLG}, s{sW}, {LA}
    s_mul_i32 s{sT}, s{sRB}, {64*1280}
    s_mul_i32 s{sT2}, s{sW}, 320
    s_add_u32 s{sT3}, s{sT}, s{sT2}
    v_add_u32 v{oX+4}, 4096, v{oX+4}
    s_waitcnt lgkmcnt(0)
    s_load_dword s{sN}, s[{sWS}:{sWS+1}], {WS_EP}
    s_barrier""")
    ts(a, opt, 1)
    for grp in range(4):
        a(f"""s_xor_b32 s{sT}, s{sW}, {grp}
        s_mul_i32 s{sT}, s{sT}, {16*1280}
        s_add_u32 m0, s{sLG}, {grp*5120}
        s_add_u32 s{sT}, s{sT}, s{sT3}""")
        for i in range(5):
            if i == 4: a(f"s_add_u32 m0, s{sLG}, {grp*5120+4096}\ns_nop 0")
            a.vm(f"buffer_load_dwordx4 v{oX+i}, {XS}, s{sT} offen offset:{(i&3)*1024} lds", "x")
    for i in range(3):
        div(a, t, i, 5462)
        a(f"v_mul_u32_u24 v{t}, {3072-192}, v{t}\nv_lshl_add_u32 v{oZ+i}, v0, 4, v{t}")
    a(f"""s_mul_i32 s{sRing}, s{sW}, {BS_}
    s_add_u32 s{sRing}, s{sRing}, {LB}
    s_mul_i32 s{sZo}, s{sW}, {160*3072}
    s_mul_i32 s{sT}, s{sCG}, 192
    s_add_u32 s{sZo}, s{sZo}, s{sT}""")
    def zdma(s, z2):
        a(f"s_add_u32 m0, s{sRing}, {(s&3)*3072}\ns_add_u32 s{sT}, s{sZo}, {s*16*3072 + 1536*z2}")
        for i in range(3): a.vm(f"buffer_load_dwordx4 v{oZ+i}, {S4(sWI)}, s{sT} offen offset:{i*1024} lds", f"w{s}")
    for s in range(4): zdma(s, 1)
    aXF = ACC + 6
    sigma(a, vRow, t, 31)
    a(f"""v_lshrrev_b32 v{t}, 5, v0
    v_bfe_u32 v{t+1}, v{vRow}, 2, 2
    v_xor_b32 v{t+1}, v{t+1}, v{t}
    v_mul_u32_u24 v{aXF}, 320, v{vRow}
    v_lshl_add_u32 v{aXF}, v{t+1}, 4, v{aXF}
    v_add_u32 v{aXF}, s{sLG}, v{aXF}
    v_xor_b32 v{aXF+1}, 32, v{aXF}
    s_and_b32 s{sT}, s{sW}, 1
    s_lshl_b32 s{sT}, s{sT}, 4
    v_xor_b32 v{vRow}, s{sT}, v{vRow}
    v_xor_b32 v{L16x}, s{sT}, v0
    v_bfe_u32 v{t+1}, v0, 2, 2
    v_lshl_or_b32 v{t}, v{t}, 3, v{t+1}
    v_mul_u32_u24 v{t}, 192, v{t}
    v_and_b32 v{t+1}, 3, v0
    v_lshl_add_u32 v{t}, v{t+1}, 3, v{t}
    v_and_b32 v{t+1}, 16, v{L16x}
    v_lshl_add_u32 v{t}, v{t+1}, 1, v{t}
    v_add_u32 v{aW}, s{sRing}, v{t}
    v_lshlrev_b32 v{L16x}, 4, v{L16x}
    s_lshl_b32 s{sT}, s{sW}, 2
    s_add_u32 s{sT}, s{sT}, {F_G}
    v_mov_b32 v{vFA}, s{sT}
    v_and_b32 v{vFW}, 3, v0
    v_lshlrev_b32 v{vFW}, 2, v{vFW}
    v_add_u32 v{vFW}, {F_G}, v{vFW}""")
    for rho in range(4): a(f"s_xor_b32 s{sT}, s{sW}, {rho}\ns_mul_i32 s{sT}, s{sT}, {BS_}\ns_add_u32 s{sT}, s{sT}, {LB}\nv_add_u32 v{aR+rho}, s{sT}, v{L16x}")
    c0 = -2 * (2 / 3.141592653589793) ** 0.5 * 1.4426950408889634
    a(f"s_mov_b32 s{sG}, {fb(c0*0.044715)}\ns_mov_b32 s{sG+1}, s{sG}")
    a.vmwait("x")
    ts(a, opt, 2)
    for s in range(10):
        for p in range(2): a.lg(f"ds_read_b128 {R(XF+8*s+4*p,4)}, v{aXF+(s&1)} offset:{p*10240+(s>>1)*64}", "x")
    def zgemm(z2):
        def rd(s):
            a.vmwait(f"w{s}")
            for T in range(3):
                for e in range(2): a.lg(f"ds_read_b64_tr_b16 {R(WF[s&1]+4*T+2*e,2)}, v{aW} offset:{(s&3)*3072+e*768+T*64}", f"f{s}")
        rd(0)
        for s in range(10):
            a.lgwait(f"f{s}")
            if z2 and s == 0:
                a(f"s_add_u32 s{sN}, s{sN}, 0x9e3779b1"); sb_arrive(a, vFA, P, 1)
            if s + 4 < 10: zdma(s + 4, z2)
            for T in range(3):
                if T == opt.get("zds", 1) and s < 9: rd(s + 1)
                for p in (1, 0):
                    d = R(ACC + (3*p+T)*16, 16); x, w = R(XF+8*s+4*p, 4), R(WF[s&1]+4*T, 4)
                    a(f"v_mfma_f32_32x32x16_bf16 {d}, {x if z2 else w}, {w if z2 else x}, {d if s else 0}")
    def bfly(rho, ph, dst):
        for i in range(12): a.lg(f"ds_write_b128 v{aR+rho[0]}, {R(ACC+48+4*i,4)} offset:{i*1024}", "w")
        sb_arrive(a, vFA, P, ph); sb_wait(a, vFW, P, ph, sC)
        order = [2, 3, 6, 7, 10, 11, 0, 1, 4, 5, 8, 9]
        for i in order: a.lg(f"ds_read_b128 {R(ACC+48+4*i,4)}, v{aR+rho[1]} offset:{i*1024}", f"r{i}")
        add = lambda i: [a(f"v_pk_add_f32 {R(ACC+4*i+e,2)}, {R(ACC+4*i+e,2)}, {R(ACC+48+4*i+e,2)}") for e in (0, 2)]
        for i in order[:6]: a.lgwait(f"r{i}"); add(i)
        for n, i in enumerate(order[:6]): a.lg(f"ds_write_b128 v{aR+rho[1]}, {R(ACC+4*i,4)} offset:{i*1024}", "w")
        sb_arrive(a, vFA, P, ph + 1)
        a.lgwait("r9")
        for i in order[6:]: add(i)
        yield
        sb_wait(a, vFW, P, ph + 1, sC)
        for i in order[:6]: a.lg(f"ds_read_b128 {R(ACC+4*i,4)}, v{aR+rho[2]} offset:{i*1024}", f"r{i}")
        for n, i in enumerate(order[:6]):
            a.lgwait(f"r{i}")
            for e in (0, 2): a(f"v_pk_add_f32 {R(dst+4*n+e,2)}, {R(ACC+4*i-8+e,2)}, {R(ACC+4*i+e,2)}")
    def gelu24(T):
        a(f"v_mov_b32 v{T+8}, {fb(c0)}\nv_mov_b32 v{T+9}, {fb(c0)}")
        gelu(a, list(range(Z, Z + 24)), T, sG)
    zgemm(1)
    ts(a, opt, 3)
    prio(1)
    a(f"""s_xor_b32 s{sT}, s{sW}, 3
    s_sub_u32 s{sT}, s{sT}, s{sW}
    s_mul_i32 s{sT}, s{sT}, {BS_}
    s_add_u32 s{sRing}, s{sRing}, s{sT}
    v_add_u32 v{aW}, s{sT}, v{aW}
    s_nop 7""")
    for _ in bfly((0, 2, 3), 2, Z): pass
    ts(a, opt, 4)
    for s in range(4): zdma(s, 0)
    gelu24(ACC)
    S = ACC; Qd = ACC + 8
    for e in range(0, 8, 2):
        a(f"v_pk_add_f32 {R(S+e,2)}, {R(Z+e,2)}, {R(Z+8+e,2)}\nv_pk_mul_f32 {R(Qd+e,2)}, {R(Z+e,2)}, {R(Z+e,2)}")
    for e in range(0, 8, 2):
        a(f"v_pk_add_f32 {R(S+e,2)}, {R(S+e,2)}, {R(Z+16+e,2)}\nv_pk_fma_f32 {R(Qd+e,2)}, {R(Z+8+e,2)}, {R(Z+8+e,2)}, {R(Qd+e,2)}")
    for e in range(0, 8, 2): a(f"v_pk_fma_f32 {R(Qd+e,2)}, {R(Z+16+e,2)}, {R(Z+16+e,2)}, {R(Qd+e,2)}")
    for b in (S, Qd):
        for e in range(4): a(f"v_permlane16_swap_b32 v{b+e}, v{b+4+e}")
    for b in (S, Qd):
        for e in (0, 2): a(f"v_pk_add_f32 {R(b+e,2)}, {R(b+e,2)}, {R(b+4+e,2)}")
    a(f"""s_lshl_b32 s{sT2}, s{sRB}, 2
    s_add_u32 s{sT2}, s{sT2}, s{sW}""")
    for o, m in ((0, 3), (2, 12)):
        for b in (S, Qd):
            for e in range(2): a(f"v_add_f32_dpp v{b+4+e}, v{b+o+e}, v{b+o+e} row_ror:8 row_mask:0xf bank_mask:{m:#x}")
    a(f"""s_lshl_b32 s{sT3}, s{sT2}, 11
    s_add_u32 s{sT3}, s{sT3}, {WS_ST}""")
    for o, m in ((0, 5), (1, 10)):
        for b, d in ((S, S), (Qd, S + 2)): a(f"v_add_f32_dpp v{d}, v{b+4+o}, v{b+4+o} row_half_mirror row_mask:0xf bank_mask:{m:#x}")
        a(f"v_mov_b32 v{S+1+2*o}, s{sN}")
    for st in ("quad_perm:[1,0,3,2]", "quad_perm:[2,3,0,1]"):
        for d in (S, S + 2): a(f"v_add_f32_dpp v{d}, v{d}, v{d} {st} row_mask:0xf bank_mask:0xf")
        a(f"v_lshlrev_b32 v{S+4}, 2, v0" if st[11] == "1" else f"s_lshl_b32 s{sT}, s{sCG}, 8")
    a(f"""s_add_u32 s{sT}, s{sT}, s{sT3}
    s_mov_b32 exec_lo, 0x11111111
    s_mov_b32 exec_hi, 0x11111111""")
    a.vm(f"buffer_store_dwordx4 {R(S,4)}, v{S+4}, {WS}, s{sT} offen sc1", "st")
    a("s_mov_b64 exec, -1")
    prio(0)
    ts(a, opt, 5)
    zgemm(0)
    ts(a, opt, 6)
    S = XF
    poll(a, [f"buffer_load_dwordx4 {R(S+4*i,4)}, v{L16x}, {WS}, s{sT3} offen offset:{i*1024} sc1" for i in range(2)], [S+1, S+3, S+5, S+7])
    ts(a, opt, 7)
    prio(1)
    a(f"v_add_f32 v{S}, v{S}, v{S+4}\nv_add_f32 v{S+1}, v{S+2}, v{S+6}")
    xsum(a, [S, S+1], [S+2, S+3])
    a(f"""v_mul_f32 v{S}, {fb(1/768)}, v{S}
    v_mul_f32 v{S+1}, {fb(1/768)}, v{S+1}
    s_mul_i32 s{sZ0}, s{sCG}, {128*3072}
    v_fma_f32 v{S+1}, -v{S}, v{S}, v{S+1}
    s_add_u32 s{sZ0}, s{sZ0}, {WS_Z2N}
    v_max_f32 v{S+1}, 0, v{S+1}
    s_mul_i32 s{sT}, s{sT2}, 3072
    v_add_f32 v{S+1}, {fb(1e-5)}, v{S+1}
    s_add_u32 s{sT}, s{sT}, s{sZ0}
    v_rsq_f32 v{S+1}, v{S+1}
    s_mul_i32 s{sT2}, s{sW}, {4*3072}
    v_mul_f32_e64 v{S}, -v{S}, v{S+1}
    s_add_u32 s{sZ0}, s{sZ0}, s{sT2}
    v_mov_b32_dpp v{S+1}, v{S+1} row_ror:8 row_mask:0xc bank_mask:0xf
    v_mov_b32_dpp v{S}, v{S} row_ror:8 row_mask:0xc bank_mask:0xf
    s_nop 0""")
    B = S + 2; PK = S + 20
    for j in range(8):
        a(f"v_mov_b32_dpp v{B+j}, v{S+1} row_newbcast:{j} row_mask:0xf bank_mask:0xf")
        a(f"v_mov_b32_dpp v{B+8+j}, v{S} row_newbcast:{j} row_mask:0xf bank_mask:0xf")
    for i in range(3):
        for e in range(0, 8, 2): a(f"v_pk_fma_f32 {R(Z+8*i+e,2)}, {R(Z+8*i+e,2)}, {R(B+e,2)}, {R(B+8+e,2)}")
        for e in range(4): a(f"v_cvt_pk_bf16_f32 v{PK+4*i+e}, v{Z+8*i+2*e}, v{Z+8*i+2*e+1}")
        a.vm(f"buffer_store_dwordx4 {R(PK+4*i,4)}, v{L16x}, {WS}, s{sT} offen offset:{i*1024} sc1", "z")
    a(f"""s_lshl_b32 s{sT2}, s{sCG}, 9
    s_add_u32 s{sT2}, s{sT2}, {WS_ZF}
    s_and_b32 s{sT}, s{sRB}, 3
    s_lshl_b32 s{sT}, s{sT}, 5
    s_and_b32 s{sT3}, s{sRB}, 28
    s_add_u32 s{sT}, s{sT}, s{sT3}
    s_add_u32 s{sT}, s{sT}, s{sW}
    s_lshl_b32 s{sT}, s{sT}, 2
    s_add_u32 s{sT3}, s{sT}, s{sT2}
    s_lshl_b32 s{sT}, s{sW}, 7
    s_add_u32 s{sT2}, s{sT2}, s{sT}""")
    bf = bfly((3, 1, 0), 4, Z); next(bf)
    a.vmwait("z")
    flag(a, S, S + 1, sT3)
    ts(a, opt, 8)
    for _ in bf: pass
    sb_arrive(a, vFA, P, 6)
    X = g.X
    a(f"""s_lshr_b32 s{sT3}, s{sW}, 1
    s_lshl_b32 s{sW0}, s{sRB}, 1
    s_add_u32 s{sW0}, s{sW0}, s{sT3}
    s_lshl_b32 s{sZo}, s{sW0}, 6
    s_lshl_b32 s{sW0}, s{sW0}, 17
    s_lshl_b32 s{sT}, s{sW}, 7
    s_add_u32 s{sW0}, s{sW0}, s{sT}
    s_xor_b32 s{sW0+1}, s{sW0}, 0x20000
    s_lshl_b32 s{sT}, s{sCG}, 1
    s_add_u32 s{sI}, s{sRB}, s{sT}
    s_and_b32 s{sI}, s{sI}, {opt.get('grot', 8) - 1}
    s_lshl_b32 s{sT3}, s{sT3}, 7
    s_add_u32 s{sT3}, s{sT3}, {L_GT}
    v_lshlrev_b32 v{X+4}, 1, v{vRow}
    v_lshl_add_u32 v{X+5}, v{vRow}, 2, s{sT3}
    v_subrev_u32 v{X+6}, 16, v{vFW}""")
    a.vm(f"buffer_load_ushort v{vB}, v{X+4}, {S4(sBS)}, s{sZo} offen", "e")
    g_addr(a, g, sW, sLG, sT, vRow)
    P = X + 7
    sb_wait(a, X + 6, P, 3, sC)
    a.lg(f"ds_read_b32 v{X+4}, v{X+5}", "g")
    gg = g_gemm(a, opt, N, g, WS, S4(sSP), sLG, sZ0, sW0, sI, sZ, sWp, sM, sD, sC, sT)
    next(gg)
    gelu24(ACC)
    a.lgwait("g")
    a(f"v_sub_f32 v{X+4}, 1.0, v{X+4}\nv_and_b32 v{X+6}, 31, v0\nv_lshlrev_b32 v{X+6}, 2, v{X+6}")
    for e in range(0, 24, 2): a(f"v_pk_mul_f32 {R(Z+e,2)}, {R(Z+e,2)}, {R(X+4,2)} op_sel_hi:[1,0]")
    prio(0)
    ts(a, opt, 9)
    poll(a, [f"buffer_load_dword v{P}, v{X+6}, {WS}, s{sT2} offen sc1"], [P])
    ts(a, opt, 10)
    for _ in gg: pass
    ts(a, opt, 11)
    prio(1)
    for rho in range(4): a(f"s_xor_b32 s{sT}, s{sW}, {rho}\ns_mul_i32 s{sT}, s{sT}, {LA}\nv_add_u32 v{g.aB+rho}, s{sT}, v{L16x}")
    sFl, sYa, sYb, sU, sO = sZ0, 62, 63, sZ, sM
    a(f"""v_lshlrev_b32 v{vB}, 16, v{vB}
    v_and_or_b32 v{X}, v0, 32, v{vRow}
    v_lshlrev_b32 v{X}, 4, v{X}
    s_lshl_b32 s{sT}, s{sRB}, 3
    s_and_b32 s{sT2}, s{sCG}, 6
    s_add_u32 s{sT}, s{sT}, s{sT2}
    s_lshl_b32 s{sFl}, s{sT}, 6
    s_lshr_b32 s{sT3}, s{sW}, 1
    s_add_u32 s{sT}, s{sT}, s{sT3}
    s_mul_i32 s{sT}, s{sT}, 22
    s_and_b32 s{sT2}, s{sCG}, 1
    s_mul_i32 s{sT3}, s{sT2}, 6
    s_add_u32 s{sT}, s{sT}, s{sT3}
    s_lshl_b32 s{sT2}, s{sT2}, 2
    s_add_u32 s{sT2}, s{sT2}, s{sW}
    s_lshl_b32 s{sT2}, s{sT2}, 2
    s_add_u32 s{sFl}, s{sFl}, s{sT2}
    s_add_u32 s{sFl}, s{sFl}, {WS_UF}
    s_and_b32 s{sT3}, s{sW}, 1
    s_add_u32 s{sT}, s{sT}, s{sT3}
    s_lshl_b32 s{sT}, s{sT}, 10
    s_add_u32 s{sT3}, s{sT}, {WS_Y2 + 10240}
    s_add_u32 s{sT2}, s{sT3}, 4096""")
    red_write(a, ACC, g.aB)
    sb_arrive(a, vFA, P, 7)
    oU, oR2, oS, vY, aO = 240, 245, 4, 246, 2
    t = X + 1
    a(f"s_movk_i32 s{sT}, 1120\nv_lshlrev_b32 v{t+1}, 4, v0")
    for i in range(5):
        div(a, t, i, 6554)
        a(f"v_mad_u32_u24 v{oU+i}, v{t}, s{sT}, v{t+1}")
    a(f"""v_add_u32 v{oU+4}, 4096, v{oU+4}
    v_lshrrev_b32 v{t}, 5, v0
    v_mul_u32_u24 v{t+1}, 5120, v{t}
    v_add_u32 v{oR2}, v{t+1}, v{oU+2}
    v_lshrrev_b32 v{t}, 4, v0
    v_and_b32 v{t+1}, 15, v0
    v_lshl_or_b32 v{t}, v{t}, 5, v{t+1}
    s_and_b32 s{sT}, s{sW}, 1
    s_lshl_b32 s{sT}, s{sT}, 8
    v_lshl_or_b32 v{vY}, v{t}, 4, s{sT}
    v_xor_b32 v{vY+1}, 256, v{vY}""")
    tr160(a, aO, t, sLG)
    sb_wait(a, vFW, P, 7, sC)
    F = g.ZR
    red_read(a, ACC, [g.aB+1, g.aB+2, g.aB+3], F)
    sb_arrive(a, vFA, P, 8)
    for e in range(0, 24, 2):
        a(f"v_pk_add_f32 {R(F+e,2)}, {R(F+e,2)}, {R(vB,2)} op_sel_hi:[1,0]")
    for e in range(0, 24, 2):
        a(f"v_pk_mul_f32 {R(F+e,2)}, {R(F+e,2)}, {R(Z+e,2)}")
    for e in range(0, 24, 2):
        a(f"v_cvt_pk_bf16_f32 v{ACC+e//2}, v{F+e}, v{F+e+1}")
        if e % 8 == 6: a.vm(f"buffer_store_dwordx4 {R(ACC+(e//8)*4,4)}, v{X}, {WS}, s{sT2 if e == 22 else sT3} offen offset:{((e//8)&1)*2048} sc1", "u")
    prio(0)
    a(f"""s_mul_i32 s{sT}, s{sCG}, 160
    s_mul_i32 s{sU}, s{sW}, {192*1280}
    s_add_u32 s{sU}, s{sU}, s{sT}
    s_mul_i32 s{sO}, s{sW}, {160*1280}
    s_add_u32 s{sO}, s{sO}, s{sT}""")
    sb_wait(a, vFW, P, 8, sC)
    Y, WF = 96, [192, 212]; P = 3
    def odma(k):
        sl = (k & 3) * 5120
        a(f"s_add_u32 m0, s{sLG}, {sl}")
        if k < 6: a(f"s_add_u32 s{sT}, s{sU}, {k*32*1280}")
        else: a(f"s_add_u32 s{sT}, s{sO}, {(k-6)*40*1280 if k < 10 else 0}")
        for i in range(5):
            if i == 3 and 6 <= k < 10: a(f"s_add_u32 s{sT}, s{sT}, 5120")
            if i == 4: a(f"s_add_u32 m0, s{sLG}, {sl+4096}\ns_nop 0")
            v = oS + i if k == 10 else oR2 if (k >= 6 and i == 2) else oU + i
            a.vm(f"buffer_load_dwordx4 v{v}, {S4(sWU if k < 6 else sWO)}, s{sT} offen offset:{(i&3)*1024} lds", f"w{k}")
    for k in range(4): odma(k)
    a.vmwait("u")
    flag(a, t, t + 1, sFl)
    ts(a, opt, 12)
    a(f"s_movk_i32 s{sT}, 1280")
    for i in range(5):
        div(a, t, i, 6554)
        a(f"""v_bfe_u32 v{t+1}, v{t}, 2, 1
        v_bfe_u32 v{t+2}, v{t}, 3, 1
        v_lshrrev_b32 v{t}, 4, v{t}
        v_mul_u32_u24 v{t+1}, 36, v{t+1}
        v_mad_u32_u24 v{t+1}, v{t+2}, 12, v{t+1}
        v_lshl_add_u32 v{t+1}, v{t}, 6, v{t+1}
        v_add_u32 v{t+1}, 16, v{t+1}
        v_mad_u32_u24 v{oS+i}, v{t+1}, s{sT}, v{oU+i}""")
    vPA = 9
    a(f"""v_and_b32 v{vPA}, 7, v0
    v_lshlrev_b32 v{vPA}, 2, v{vPA}
    s_lshl_b32 s{sT}, s{sRB}, 2
    s_add_u32 s{sT}, s{sT}, s{sW}
    s_lshl_b32 s{sFl}, s{sT}, 7
    s_add_u32 s{sFl}, s{sFl}, {WS_UF}
    s_mul_i32 s{sT}, s{sT}, {44*1024}
    s_add_u32 s{sT}, s{sT}, {WS_Y2}
    s_add_u32 s{sT2}, s{sT}, {22*1024}
    s_cmp_ge_u32 s{sW}, 2
    s_cselect_b32 s{sYa}, s{sT2}, s{sT}
    s_cselect_b32 s{sYb}, s{sT}, s{sT2}""")
    def yld(k0, n, u0):
        for s in range(n):
            if s & 1 == 0: a(f"s_add_u32 s{sT2}, s{sYa}, {(u0+2*s)*1024}\ns_add_u32 s{sT3}, s{sYb}, {(u0+2*s)*1024}")
            for p in range(4): a.vm(f"buffer_load_dwordx4 {R(Y+16*s+4*p,4)}, v{vY+(p&1)}, {WS}, s{sT3 if p>>1 else sT2} offen offset:{(s&1)*2048} sc1", f"y{k0+s}")
    def rdW(k):
        a.vmwait(f"w{k}")
        for T in range(5):
            for e in range(2): a.lg(f"ds_read_b64_tr_b16 {R(WF[k&1]+4*T+2*e,2)}, v{aO} offset:{(k&3)*5120+e*1280+T*8}", f"f{k}")
    def ostep(k, k0, rdn):
        a.lgwait(f"f{k}")
        if k < 6: odma(k + 4)
        a.vmwait(f"y{k}")
        for T in range(5):
            if T == opt.get("ods", 1) and rdn: rdW(k + 1)
            for p in range(4):
                d = R(ACC + 20*p + 4*T, 4)
                a(f"v_mfma_f32_16x16x32_bf16 {d}, {R(WF[k&1]+4*T,4)}, {R(Y+16*(k-k0)+4*p,4)}, {d if k else 0}")
    poll(a, [f"buffer_load_dword v{P}, v{vPA}, {WS}, s{sFl} offen sc1"], [P])
    ts(a, opt, 13)
    yld(0, 6, 10); rdW(0)
    for k in range(6): ostep(k, 0, True)
    a.lgwait("f6"); odma(10); rdW(7)
    L16, vA, vO = 1, 10, 14
    a(f"""s_add_u32 s{sFl}, s{sFl}, {WS_GF - WS_UF}
    v_lshlrev_b32 v{L16}, 4, v0
    v_and_b32 v{vO}, 15, v0
    v_lshrrev_b32 v{P}, 4, v0
    v_mul_u32_u24 v{vO}, 1280, v{vO}
    v_mad_u32_u24 v{vO}, v{P}, 40, v{vO}""")
    red = red20(a, ACC, 20, L16, vA, vFA, vFW, P, 9, False); next(red)
    ts(a, opt, 14)
    poll(a, [f"buffer_load_dword v{P}, v{vPA}, {WS}, s{sFl} offen sc1"], [P])
    ts(a, opt, 15)
    yld(6, 5, 0)
    for k in range(6, 11): ostep(k, 6, 6 < k < 10)
    a(f"""s_lshl_b32 s{sT2}, s{sRB}, 2
    s_add_u32 s{sT2}, s{sT2}, s{sW}
    s_mul_i32 s{sT2}, s{sT2}, {16*1280}
    s_mul_i32 s{sT3}, s{sCG}, 160
    s_add_u32 s{sT2}, s{sT2}, s{sT3}
    s_or_b32 s{sT3}, s{sW}, s2""")
    for _ in red: pass
    for e in range(10): a(f"v_cvt_pk_bf16_f32 v{Y+e}, v{ACC+2*e}, v{ACC+2*e+1}")
    a(f"""buffer_store_dwordx4 {R(Y,4)}, v{vO}, {S4(sOUT)}, s{sT2} offen
    buffer_store_dwordx4 {R(Y+4,4)}, v{vO}, {S4(sOUT)}, s{sT2} offen offset:16
    buffer_store_dwordx2 {R(Y+8,2)}, v{vO}, {S4(sOUT)}, s{sT2} offen offset:32""")
    ts(a, opt, 0)
    a(f"s_cmp_lg_u32 s{sT3}, 0\ns_cbranch_scc1 {N}_end\ns_mov_b32 s{sT}, {WS_EP}")
    flag(a, P, P + 1, sT)
    a.label(f"{N}_end")
    ts_dump(a, opt, 1)
    a("s_endpgm")
```

```python
from common import *
from kP import fb, gelu
KVT = 2560
WS_KV2 = 0x0
WS_Y2 = 0x1000000
LB = 81920
L_FL = 162816
uid = [0]
def lbl(p):
    uid[0] += 1; return f"{p}_{uid[0]}"

def sb_arrive(a, vA, vP, phase, off=0):
    a(f"""v_mov_b32 v{vP}, {phase}
    s_mov_b64 exec, 1""")
    a.lg(f"ds_write_b32 v{vA}, v{vP} offset:{off}", "sbw")
    a("s_mov_b64 exec, -1")
def sb_wait(a, vA, vP, phase, sC, off=0):
    L = lbl("sbw")
    a(f"""s_mov_b32 s{sC}, 0x40000
    {L}:
    ds_read_b32 v{vP}, v{vA} offset:{off}
    s_sub_u32 s{sC}, s{sC}, 1
    s_waitcnt lgkmcnt(0)
    v_cmp_gt_u32 vcc, {phase}, v{vP}
    s_cbranch_scc1 {L}_x
    s_cbranch_vccnz {L}
    {L}_x:""")
    a.lgq = []

class AttR:
    def __init__(s, NT):
        s.NT = NT
        s.L16, s.K2a, s.Va, s.IDX, s.G = 1, 2, 3, 4, 5
        s.T = 6
        s.K = [12, 18]; s.V = [24, 32]; s.S = [40, 56]
        s.Q = [72 + 6*i for i in range(NT)]
        o = 72 + 6*NT
        s.O = [o + 16*i for i in range(NT)]
        s.end = o + 16*NT

def att_consts(a, r, sMV, zero=True):
    T = r.T
    a(f"""v_lshlrev_b32 v{r.L16}, 4, v0
    v_lshlrev_b32 v{r.K2a}, 3, v0
    v_lshrrev_b32 v{T}, 5, v0
    v_and_b32 v{T+1}, 31, v0
    v_mul_u32_u24 v{T}, 320, v{T}
    v_lshl_add_u32 v{r.Va}, v{T+1}, 4, v{T}
    v_cmp_eq_u32 vcc, 20, v{T+1}
    v_mov_b32 v{T}, 0x3f803f80
    v_mov_b32 v{r.IDX}, 0xdddddddd
    s_mov_b32 s{sMV}, 0xfffff
    s_mov_b32 s{sMV+1}, 0xfffff""")
    for b in range(2):
        a(f"v_mov_b32 v{r.K[b]+4}, v{T}\nv_mov_b32 v{r.K[b]+5}, 0x3f80")
        for i in range(8): a(f"v_cndmask_b32 v{r.V[b]+i}, 0, v{T}, vcc")
    if zero: att_zero(a, r)
def att_zero(a, r):
    for i in [o + e for o in r.O for e in range(0, 12, 2)] + list(range(r.S[1], r.S[1] + 16, 2)): a(f"v_mov_b64 {R(i,2)}, 0")

def att_loop(a, opt, N, r, WS, sKB, sRot, sKo, sVo, sC, sMV, vCW, vFA, phase, pre=None):
    NT = r.NT; S, Q, O, K, V = r.S, r.Q, r.O, r.K, r.V
    aux = opt.get("kvaux", "sc1")
    QK1 = lambda t, b: f"v_mfma_f32_32x32x16_bf16 {R(S[t&1],16)}, {R(K[b],4)}, {R(Q[t],4)}, 0"
    QK2 = lambda t, b: f"v_mfma_f32_32x32x8_bf16 {R(S[t&1],16)}, {R(K[b]+4,2)}, {R(Q[t]+4,2)}, {R(S[t&1],16)}"
    PV = lambda t, h, b: f"v_smfmac_f32_32x32x32_bf16 {R(O[t],16)}, {R(V[b]+4*h,4)}, {R(S[t&1]+8*h,8)}, v{r.IDX}"
    def adv(s):
        return [f"s_add_u32 s{s}, s{s}, {KVT}", f"s_cmp_eq_u32 s{s}, s{sRot}", f"s_cselect_b32 s{s}, s{sKB}, s{s}"]
    def ldK(b):
        a(f"buffer_load_dwordx4 {R(K[b],4)}, v{r.L16}, {WS}, s{sKo} offen {aux}")
        a(f"s_mov_b32 exec_hi, 0\nbuffer_load_dwordx2 {R(K[b]+4,2)}, v{r.K2a}, {WS}, s{sKo} offen offset:1024 {aux}\ns_mov_b32 exec_hi, -1")
    def ldV(b):
        a(f"s_mov_b64 exec, s[{sMV}:{sMV+1}]")
        for h in range(2): a(f"buffer_load_dwordx4 {R(V[b]+4*h,4)}, v{r.Va}, {WS}, s{sVo} offen offset:{1280+640*h} {aux}")
        a("s_mov_b64 exec, -1")
    a(f"""s_add_u32 s{sKo}, s{sKB}, s{sRot}
    s_add_u32 s{sRot}, s{sKB}, {16*KVT}
    s_mov_b32 s{sVo}, s{sKo}""")
    ldK(0); [a(x) for x in adv(sKo)]; ldV(0); [a(x) for x in adv(sVo)]; ldK(1); [a(x) for x in adv(sKo)]
    yield "loaded"
    a(f"s_mov_b32 s{sC}, 7\ns_waitcnt vmcnt(4)")
    a(QK1(0, 0)); a(QK2(0, 0)); a("s_nop 11")
    pv1, qk1, qk2, pv0 = opt.get("sched", (2, 5, 8, 12))
    nomem = opt.get("nokv")
    def period(b, mode):
        for t in range(NT):
            fill = {}
            if t == 1 and mode < 2: fill = dict(zip((3, 6, 9), adv(sVo)))
            if t == 2 and mode < 1: fill = {}
            if t == NT - 1 and mode < 1: fill = dict(zip((3, 6, 9), adv(sKo)))
            for e in range(16):
                if e == 0 and t == NT - 1 and mode < 1 and not nomem: ldK(b)
                if pv0 >= 16 and e == pv0 - 16:
                    if t == 1: a(f"s_waitcnt vmcnt({4 if mode < 2 else 0})")
                    a(PV((t - 1) % NT, 0, b if t else 1 - b))
                if e == pv1:
                    a(PV((t - 1) % NT, 1, b if t else 1 - b))
                    if t == 0 and mode < 2 and not nomem: ldV(1 - b)
                lastqk = mode == 2 and t == NT - 1
                if e == qk1 and not lastqk:
                    if t == NT - 1: a(f"s_waitcnt vmcnt({4 if mode == 0 else 2})")
                    a(QK1((t + 1) % NT, b if t < NT - 1 else 1 - b))
                if e == qk2 and not lastqk: a(QK2((t + 1) % NT, b if t < NT - 1 else 1 - b))
                if e == pv0:
                    if t == 0: a(f"s_waitcnt vmcnt({4 if mode < 2 else 0})")
                    a(PV(t, 0, b))
                if e in fill: a(fill[e])
                if pre and mode == 2 and t == 0 and e == 1: a(f"ds_read_b32 v{r.T}, v{pre[0]}")
                if pre and mode == 2 and t == 1 and e == 7: a(f"s_waitcnt lgkmcnt(0)\nv_cmp_gt_u32 vcc, {pre[1]}, v{r.T}")
                if pre and mode == 2 and t == 1 and e == 9: a(f"s_cbranch_vccnz {N}_pre\n{N}_preb:")
                nf = NT * 3 // 4
                if mode == 2 and 1 <= t <= nf and e in (11, 13, 15):
                    i = (e - 11) // 2
                    a(f"ds_write_b128 v{vCW}, {R(O[t-1]+4*i,4)} offset:{(t-1)*3072+i*1024}")
                    if t == nf and e == 15: sb_arrive(a, vFA, r.T, phase)
                if mode == 0 and b == 1 and t == NT - 1 and e == 14: a(f"s_sub_u32 s{sC}, s{sC}, 1")
                if mode == 0 and b == 1 and t == NT - 1 and e == 15: a(f"s_cmp_lg_u32 s{sC}, 0")
                a(f"v_exp_f32 v{S[t&1]+e}, v{S[t&1]+e}")
    a(".p2align 6"); a.label(f"{N}_loop")
    period(0, 0); period(1, 0)
    a(f"s_cbranch_scc1 {N}_loop")
    period(0, 1); period(1, 2)
    if pv0 >= 16: a(PV(NT - 1, 0, 1))
    a("s_nop 1")
    a(PV(NT - 1, 1, 1))
    a.lgq = []; a.vmq = []

def att_fallback(a, N, r, i, WS, sT, sMV, aux, back):
    T = r.T; S, K, V = r.S[0], r.K[0], r.V[0]; Q, O = r.Q[i], r.O[i]
    QK = f"""v_mfma_f32_32x32x16_bf16 {R(S,16)}, {R(K,4)}, {R(Q,4)}, 0
    v_mfma_f32_32x32x8_bf16 {R(S,16)}, {R(K+4,2)}, {R(Q+4,2)}, {R(S,16)}"""
    LK = f"""buffer_load_dwordx4 {R(K,4)}, v{r.L16}, {WS}, s{sT} offen {aux}
    s_mov_b32 exec_hi, 0
    buffer_load_dwordx2 {R(K+4,2)}, v{r.K2a}, {WS}, s{sT} offen offset:1024 {aux}"""
    a(f"""{N}:
    v_cmp_gt_u32 vcc, 32, v0
    v_mov_b32 v{T}, 0xff800000
    s_mov_b32 s{sT}, {WS_KV2}
    v_cndmask_b32 v{Q+4}, 0, v{Q+4}, vcc
    {N}_1:
    {LK}
    s_mov_b32 exec_hi, -1
    s_waitcnt vmcnt(0)
    {QK}
    s_add_u32 s{sT}, s{sT}, {KVT}
    s_nop 11""")
    for e in range(0, 16, 2): a(f"v_max3_f32 v{T}, v{T}, v{S+e}, v{S+e+1}")
    a(f"""s_cmp_lt_u32 s{sT}, {WS_KV2 + 64*KVT}
    s_cbranch_scc1 {N}_1
    v_mov_b32 v{T+1}, v{T}
    s_nop 1
    v_permlane32_swap_b32 v{T}, v{T+1}
    v_max_f32 v{T}, v{T}, v{T+1}
    v_sub_f32 v{T}, 0, v{T}
    v_and_b32 v{T+1}, 0xffff0000, v{T}
    v_sub_f32 v{T}, v{T}, v{T+1}
    v_and_b32 v{T+2}, 0xffff0000, v{T}
    v_sub_f32 v{T}, v{T}, v{T+2}
    v_lshrrev_b32 v{T+1}, 16, v{T+1}
    v_lshrrev_b32 v{T}, 16, v{T}
    v_or_b32 v{T+1}, v{T+1}, v{T+2}
    v_cndmask_b32 v{Q+4}, v{T+1}, v{Q+4}, vcc
    v_cndmask_b32 v{Q+5}, v{T}, v{Q+5}, vcc
    s_mov_b32 s{sT}, {WS_KV2}""")
    for e in range(16): a(f"v_mov_b32 v{O+e}, 0")
    a(f"""{N}_2:
    {LK}
    s_mov_b64 exec, s[{sMV}:{sMV+1}]
    buffer_load_dwordx4 {R(V,4)}, v{r.Va}, {WS}, s{sT} offen offset:1280 {aux}
    buffer_load_dwordx4 {R(V+4,4)}, v{r.Va}, {WS}, s{sT} offen offset:1920 {aux}
    s_mov_b64 exec, -1
    s_waitcnt vmcnt(0)
    {QK}
    s_add_u32 s{sT}, s{sT}, {KVT}
    s_nop 11""")
    for e in range(16): a(f"v_exp_f32 v{S+e}, v{S+e}")
    a("s_nop 1")
    for h in range(2): a(f"v_smfmac_f32_32x32x32_bf16 {R(O,16)}, {R(V+4*h,4)}, {R(S+8*h,8)}, v{r.IDX}")
    a(f"""s_cmp_lt_u32 s{sT}, {WS_KV2 + 64*KVT}
    s_cbranch_scc1 {N}_2
    s_nop 11
    v_mov_b32 v{T}, v{O+8}
    v_mov_b32 v{T+1}, v{O+8}
    s_nop 1
    v_permlane32_swap_b32 v{T}, v{T+1}
    s_branch {back}""")

def att_finish(a, N, r, i, rd, WS, sY1, sY2, sT, aux):
    T = r.T; O = r.O[i]; X = r.V[0]
    dst = [r.O[0], r.O[1], r.O[2]]
    for p, (va, off) in enumerate(rd):
        for k in range(3): a.lg(f"ds_read_b128 {R(dst[p]+4*k,4)}, v{va} offset:{off+k*1024}", f"c{p}")
    for p in range(3):
        a.lgwait(f"c{p}")
        for e in range(0, 12, 2): a(f"v_pk_add_f32 {R(O+e,2)}, {R(O+e,2)}, {R(dst[p]+e,2)}")
    a(f"""v_mov_b32 v{T}, v{O+8}
    v_mov_b32 v{T+1}, v{O+8}
    v_mov_b32 v{T+2}, 0x7e800000
    s_nop 0
    v_permlane32_swap_b32 v{T}, v{T+1}
    v_cmp_le_f32 vcc, 0x17800000, v{T+1}
    v_cmp_lt_f32 s[{sT}:{sT+1}], v{T+1}, v{T+2}
    s_nop 1
    s_and_b64 vcc, vcc, s[{sT}:{sT+1}]
    s_cmp_eq_u64 vcc, -1
    s_cbranch_scc0 {N}_fb
    {N}_fin:
    v_rcp_f32 v{T+2}, v{T+1}
    s_nop 0
    v_mul_f32 v{T+2}, v{T+2}, v{r.G}""")
    for e in range(0, 12, 2): a(f"v_pk_mul_f32 {R(O+e,2)}, {R(O+e,2)}, {R(T+2,2)} op_sel_hi:[1,0]")
    for e in range(6): a(f"v_cvt_pk_bf16_f32 v{O+e}, v{O+2*e}, v{O+2*e+1}")
    a.vm(f"buffer_store_dwordx4 {R(O,4)}, v{r.L16}, {WS}, s{sY1} offen {aux}", "y")
    a("s_mov_b32 exec_hi, 0")
    a.vm(f"buffer_store_dwordx2 {R(O+4,2)}, v{r.L16}, {WS}, s{sY2} offen {aux}", "y")
    a("s_mov_b32 exec_hi, -1")

def red_write(a, ACC, vW, nT=3):
    for rho in (1, 2, 3):
        for t in range(nT):
            for h in range(2):
                a.lg(f"ds_write_b128 v{vW}, {R(ACC + ((rho>>1)*nT+t)*16 + (rho&1)*8 + 4*h, 4)} offset:{(rho-1)*nT*2048 + t*2048 + h*1024}", "rw")
def red_read(a, ACC, vR, F, nT=3):
    g = lambda rho, t: ACC + ((rho>>1)*nT+t)*16 + (rho&1)*8
    for rho in (1, 2, 3):
        for t in range(nT):
            for h in range(2):
                a.lg(f"ds_read_b128 {R(g(rho,t)+4*h,4)}, v{vR[rho-1]} offset:{(rho-1)*nT*2048 + t*2048 + h*1024}", f"rr{rho}{t}")
    for rho in (1, 2, 3):
        for t in range(nT):
            a.lgwait(f"rr{rho}{t}")
            for e in range(0, 8, 2):
                d = F + 8*t + e if (F is not None and rho == 3) else g(0, t) + e
                a(f"v_pk_add_f32 {R(d,2)}, {R(g(0,t)+e,2)}, {R(g(rho,t)+e,2)}")

class GR:
    L16, OE, OO, aB, B, ACC, ZR = 1, 2, 3, 4, 8, 16, 112
    X = 160

def g_addr(a, g, sJ, sLG, sT, vRow=None):
    X = g.X
    a(f"""v_lshrrev_b32 v{X}, 3, v0
    v_lshrrev_b32 v{X+1}, 4, v0
    v_and_b32 v{X+2}, 7, v0
    v_xor_b32 v{X+2}, v{X+2}, v{X+1}
    v_lshlrev_b32 v{X}, 12, v{X}
    v_lshl_add_u32 v{g.OE}, v{X+2}, 4, v{X}
    v_xor_b32 v{g.OO}, 64, v{g.OE}
""")
    if vRow is None:
        vRow = X
        a(f"""s_and_b32 s{sT}, s{sJ}, 1
        s_lshl_b32 s{sT}, s{sT}, 8
        v_lshlrev_b32 v{g.L16}, 4, v0
        v_xor_b32 v{g.L16}, s{sT}, v{g.L16}
        v_and_b32 v{X}, 31, v0""")
    a(f"""v_lshrrev_b32 v{X+1}, 5, v0
    v_bfe_u32 v{X+2}, v{vRow}, 1, 3
    v_xor_b32 v{X+1}, v{X+1}, v{X+2}
    v_lshlrev_b32 v{X+1}, 4, v{X+1}
    v_lshl_add_u32 v{X+1}, v{vRow}, 7, v{X+1}""")
    for kk in range(4): a(f"v_xor_b32 v{g.aB+kk}, {kk*32}, v{X+1}")
    for kk in range(4): a(f"v_add_u32 v{g.aB+kk}, s{sLG}, v{g.aB+kk}")

def g_gemm(a, opt, N, g, WS, SP, sLG, sZ0, sW0, sI, sZ, sWp, sM, sD, sC, sT):
    aux = opt.get("zaux", "sc1"); sPX = sW0 + 1
    def setw():
        a(f"s_lshl_b32 s{sT}, s{sI}, 9\ns_add_u32 s{sWp}, s{sW0}, s{sT}\ns_add_u32 s{sWp+1}, s{sPX}, s{sT}")
    def nexti(): a(f"s_add_u32 s{sI}, s{sI}, 1\ns_and_b32 s{sI}, s{sI}, 7")
    def setz(): a(f"s_mul_i32 s{sZ}, s{sI}, {16*3072}\ns_add_u32 s{sZ}, s{sZ}, s{sZ0}")
    def wsp(rs):
        if opt.get("nomem"): return
        for r_ in rs:
            a(f"s_add_u32 m0, s{sM}, {r_*1024}")
            if r_ & 3: a(f"s_add_u32 s{sT}, s{sWp+(r_>>2)}, {(r_&3)*8*4096}")
            else: a("s_nop 0")
            a.vm(f"buffer_load_dwordx4 v{g.OO if r_ & 1 else g.OE}, {SP}, s{sT if r_ & 3 else sWp+(r_>>2)} offen {opt.get('waux','')} lds", "w")
    def z2(kk):
        if opt.get("nomem"): return
        for t in range(3): a.vm(f"buffer_load_dwordx4 {R(g.ZR + kk*12 + 4*t, 4)}, v{g.L16}, {WS}, s{sZ} offen offset:{t*1024} {aux}", f"z{kk}")
        if kk < 3: a(f"s_add_u32 s{sZ}, s{sZ}, 3072")
    rB = lambda kk, p: a.lg(f"ds_read_b128 {R(g.B+4*p,4)}, v{g.aB+kk} offset:{p*4096}", f"b{p}")
    nm = opt.pop("nomem", None)
    a(f"s_mov_b32 s{sM}, s{sLG}\ns_mov_b32 s{sD}, 8192")
    setw(); wsp(range(8)); setz()
    yield "w0"
    for kk in range(4): z2(kk)
    a.vmwait("w")
    rB(0, 0); rB(0, 1)
    if nm: opt["nomem"] = nm; a.vmwait_all()
    def body(mode):
        if mode < 2:
            nexti(); setw(); setz()
            a(f"s_add_u32 s{sM}, s{sM}, s{sD}")
        for kk in range(4):
            if mode < 2 and kk < 2: wsp(range(4*kk, 4*kk + 4))
            a.vmwait(f"z{kk}")
            if kk == 3 and mode < 2: a.vmwait("w")
            for p in range(2):
                a.lgwait(f"b{p}")
                for t in range(0 if opt.get("nogm") else 3):
                    d = R(g.ACC + (p*3+t)*16, 16)
                    a(f"v_mfma_f32_32x32x16_bf16 {d}, {R(g.ZR + kk*12 + 4*t, 4)}, {R(g.B+4*p,4)}, {d if mode or kk else 0}")
                if kk < 3 or mode < 2: rB((kk + 1) & 3, p)
                if mode < 2 and p == 0: a(f"v_add_u32 v{g.aB+kk}, s{sD}, v{g.aB+kk}") if kk else None
            if mode < 2:
                if kk == 0: a(f"v_add_u32 v{g.aB}, s{sD}, v{g.aB}")
                z2(kk)
        if mode < 2: a(f"s_sub_u32 s{sD}, 0, s{sD}")
    body(0)
    q0 = (list(a.vmq), list(a.lgq))
    a(f"s_mov_b32 s{sC}, 6"); a.label(f"{N}_gl")
    body(1)
    assert (a.vmq, a.lgq) == q0, (a.vmq, q0)
    a(f"s_sub_u32 s{sC}, s{sC}, 1\ns_cmp_lg_u32 s{sC}, 0\ns_cbranch_scc1 {N}_gl")
    body(2)
```

```python
import sys, json
from gen import build
from kF import gen_F
from chk import check
from common import NAME
opt = eval(sys.argv[1]) if len(sys.argv) > 1 else {}
out = sys.argv[2] if len(sys.argv) > 2 else "cdna_kernels/" + NAME + ".s"
t = build(opt, [gen_F])
t = t.replace(f"; @launch kernel={NAME}_kernel ", "; @launch ")
if check(t): open(out, "w").write(t); print("wrote", out, len(t))
```
